```python
import torch

def _softmax(x, axis=-1):
    return torch.softmax(x, dim=axis)
def _gelu(x):
    return torch.nn.functional.gelu(x, approximate="tanh")
def _silu(x):
    return torch.nn.functional.silu(x)
def _sigmoid(x):
    return torch.sigmoid(x)
def _layernorm(x, axis=-1, eps=1e-5):
    m = x.mean(dim=axis, keepdim=True)
    v = x.var(dim=axis, keepdim=True, unbiased=False)
    return (x - m) / torch.sqrt(v + eps)
def _scatter_add(tgt, idx, src, axis=0):
    return tgt.clone().index_add_(axis, idx, src)
def _segment_sum(src, seg, n):
    out = torch.zeros((n,) + src.shape[1:], dtype=src.dtype)
    return out.index_add_(0, seg, src)
def _pad(x, pw):
    flat = tuple(v for pair in reversed(pw) for v in pair)
    return torch.nn.functional.pad(x, flat)

kernel_name = 'interleave_layers__softmax_full_mha__dense_activation_gelu__prompt'

def setup_inputs():

    _w = (lambda a: (lambda t: t.to(torch.bfloat16) if t.is_floating_point() else t)(torch.as_tensor(a)))
    def _A_setup():
        B, S, D = 1, 2048, 512
        return {
            "x": _w((lambda *s: torch.randn(*s, dtype=torch.bfloat16) * 0.05)(B, S, D)),
            "wqkv": _w((lambda *s: torch.randn(*s, dtype=torch.bfloat16) * 0.05)(D, 3 * D)),
            "wo": _w((lambda *s: torch.randn(*s, dtype=torch.bfloat16) * 0.05)(D, D)),
        }
    _A_in = _A_setup()

    def _B_setup():
        B, S, D, F = 1, 2048, 512, 1792
        return {
            "x": _w((lambda *s: torch.randn(*s, dtype=torch.bfloat16) * 0.05)(B, S, D)),
            "w1": _w((lambda *s: torch.randn(*s, dtype=torch.bfloat16) * 0.8)(D, F) * (D ** -0.5)),
            "b1": _w((lambda *s: torch.randn(*s, dtype=torch.bfloat16) * 0.2)(F) * 0.01),
            "w2": _w((lambda *s: torch.randn(*s, dtype=torch.bfloat16) * 0.2)(F, D) * (F ** -0.5)),
            "b2": _w((lambda *s: torch.randn(*s, dtype=torch.bfloat16) * 0.2)(D) * 0.01),
        }
    _B_in = _B_setup()

    return {
        "A_x": _A_in["x"],
        "A_wqkv": _A_in["wqkv"],
        "A_wo": _A_in["wo"],
        "B_x": _B_in["x"],
        "B_w1": _B_in["w1"],
        "B_b1": _B_in["b1"],
        "B_w2": _B_in["w2"],
        "B_b2": _B_in["b2"],
    }

def reference(A_x, A_wqkv, A_wo, B_x, B_w1, B_b1, B_w2, B_b2):
    def _A_ref(x, wqkv, wo):
        B, S, D = x.shape
        H = 32; Dh = D // H
        qkv = (lambda x, *d: x.permute(*d))((x @ wqkv).reshape(B, S, 3, H, Dh), 2, 0, 3, 1, 4)
        q, k, v = qkv[0], qkv[1], qkv[2]
        scale = Dh ** -0.5
        scores = torch.einsum("bhqd,bhkd->bhqk", q, k) * scale
        p = _softmax(scores, axis=-1)
        o = torch.einsum("bhqk,bhkd->bhqd", p, v)
        return (lambda x, *d: x.permute(*d))(o, 0, 2, 1, 3).reshape(B, S, D) @ wo

    def _B_ref(x, w1, b1, w2, b2):
        h = torch.einsum("bsd,df->bsf", x, w1) + b1
        h = _gelu(h)
        return torch.einsum("bsf,fd->bsd", h, w2) + b2

    x = A_x
    x = x + _A_ref(_layernorm(x, axis=-1), A_wqkv, A_wo)
    x = x + _B_ref(_layernorm(x, axis=-1), B_w1, B_b1, B_w2, B_b2)
    x = x + _A_ref(_layernorm(x, axis=-1), A_wqkv, A_wo)
    x = x + _B_ref(_layernorm(x, axis=-1), B_w1, B_b1, B_w2, B_b2)
    return x
```

```python
import sys, math

NAME = "interleave_layers__softmax_full_mha__dense_activation_gelu__prompt"
MB = 1 << 20
WS_Q, WS_K, WS_V = 0, 2 * MB, 4 * MB
WS_O = 6 * MB
WS_X1 = 8 * MB
WS_H = 10 * MB
WS_X2 = 18 * MB
KA = dict(x=0, wqkv=8, wo=16, w1=32, b1=40, w2=48, b2=56, out=64, dbg=72, ws=80)
QSCALE = 0.25 * math.log2(math.e)

import struct
def f32(x):
    return "0x%08x" % struct.unpack("<I", struct.pack("<f", x))[0]

class Asm:
    def __init__(self):
        self.L = []
    def e(self, s):
        self.L.append("    " + s)
    def lab(self, s):
        self.L.append(s + ":")
    def c(self, s):
        self.L.append("    ; " + s)
    def nop(self, n):
        while n > 0:
            k = min(n, 16)
            self.e(f"s_nop {k-1}")
            n -= k

def vr(b, n=1):
    return f"v{b}" if n == 1 else f"v[{b}:{b+n-1}]"
def ar(b, n=1):
    return f"a{b}" if n == 1 else f"a[{b}:{b+n-1}]"
def sr(b, n=1):
    return f"s{b}" if n == 1 else f"s[{b}:{b+n-1}]"

def kernel_head(a, name):
    a.L.append(".p2align 8")
    a.L.append(f".globl {name}")
    a.L.append(f".type {name},@function")
    a.lab(name)

def kernel_desc(name, vgpr, accum, sgpr=102):
    return f""".p2align 6
.amdhsa_kernel {name}
  .amdhsa_next_free_vgpr {vgpr}
  .amdhsa_next_free_sgpr {sgpr}
  .amdhsa_accum_offset {accum}
  .amdhsa_group_segment_fixed_size 0
  .amdhsa_kernarg_size 88
  .amdhsa_user_sgpr_count 2
  .amdhsa_user_sgpr_kernarg_segment_ptr 1
  .amdhsa_system_sgpr_workgroup_id_x 1
.end_amdhsa_kernel
"""

def srd(a, d, base, size, off=0):
    if off:
        a.e(f"s_add_u32 s{d}, s{base}, 0x{off:x}")
        a.e(f"s_addc_u32 s{d+1}, s{base+1}, 0")
        a.e(f"s_and_b32 s{d+1}, s{d+1}, 0xffff")
    else:
        a.e(f"s_mov_b32 s{d}, s{base}")
        a.e(f"s_and_b32 s{d+1}, s{base+1}, 0xffff")
    a.e(f"s_mov_b32 s{d+2}, 0x{size:x}")
    a.e(f"s_mov_b32 s{d+3}, 0x20000")

def xreduce_add(a, x, t0, t1):
    a.e(f"v_mov_b32 v{t0}, v{x}")
    a.e(f"v_mov_b32 v{t1}, v{x}")
    a.nop(2)
    a.e(f"v_permlane16_swap_b32 v{t0}, v{t1}")
    a.nop(2)
    a.e(f"v_add_f32 v{x}, v{t0}, v{t1}")
    a.nop(1)
    a.e(f"v_mov_b32 v{t0}, v{x}")
    a.e(f"v_mov_b32 v{t1}, v{x}")
    a.nop(2)
    a.e(f"v_permlane32_swap_b32 v{t0}, v{t1}")
    a.nop(2)
    a.e(f"v_add_f32 v{x}, v{t0}, v{t1}")

def gemm_ln(name, mode, xsrc):
    a = Asm()
    NJ = 6 if mode == "qkv" else 7
    WROW = 3072 if mode == "qkv" else 3584
    WSIZE = 512 * WROW
    CH = NJ * 2
    PITCH = NJ * 32
    CHUNKB = 128 * PITCH
    BSZ = 4 * CHUNKB
    EX = BSZ
    LDS = BSZ + 4 * NJ * 1024
    if mode == "qkv":
        NPAT, PERROWS, DIVM = 3, 16, 43691
    else:
        NPAT, PERROWS, DIVM = 7, 32, 37450
    ND = 32 * CH // 64
    kernel_head(a, name)
    a.e("s_cmp_ge_u32 s2, 256")
    a.e(f"s_cbranch_scc1 L_{name}_end")
    if xsrc == "in":
        a.e(f"s_load_dwordx2 s[4:5], s[0:1], {KA['x']}")
    a.e(f"s_load_dwordx2 s[6:7], s[0:1], {KA['wqkv'] if mode=='qkv' else KA['w1']}")
    a.e(f"s_load_dwordx2 s[8:9], s[0:1], {KA['ws']}")
    if mode == "ffn1":
        a.e(f"s_load_dwordx2 s[10:11], s[0:1], {KA['b1']}")
    a.e("v_and_b32 v1, 63, v0")
    a.e("v_and_b32 v2, 15, v0")
    a.e("v_bfe_u32 v3, v0, 4, 2")
    a.e("v_lshrrev_b32 v28, 6, v0")
    a.nop(1)
    a.e("v_readfirstlane_b32 s30, v28")
    a.e("s_and_b32 s34, s2, 7")
    a.e("s_lshr_b32 s35, s2, 3")
    a.e("s_lshr_b32 s36, s35, 4")
    a.e("s_lshl_b32 s34, s34, 1")
    a.e("s_add_u32 s34, s34, s36")
    a.e("s_and_b32 s35, s35, 15")
    a.e("s_lshl_b32 s28, s34, 7")
    a.e(f"s_mul_i32 s29, s35, {16*NJ}")
    a.e("s_lshl_b32 s36, s30, 5")
    a.e("s_add_u32 s31, s28, s36")
    a.e(f"s_mul_i32 s32, s36, {WROW}")
    a.e("s_lshl_b32 s37, s29, 1")
    a.e("s_add_u32 s32, s32, s37")
    a.e(f"s_mul_i32 s33, s36, {PITCH}")
    a.e("s_waitcnt lgkmcnt(0)")
    if xsrc == "in":
        srd(a, 12, 4, 2 * MB)
    else:
        srd(a, 12, 8, 2 * MB, xsrc)
    srd(a, 16, 6, WSIZE)
    if mode == "qkv":
        srd(a, 20, 8, 6 * MB)
    else:
        srd(a, 20, 8, 2048 * 3584, WS_H)
        srd(a, 24, 10, 1792 * 2)
    a.e("v_add_u32 v4, s31, v2")
    a.e("v_lshlrev_b32 v4, 10, v4")
    a.e("v_lshl_add_u32 v4, v3, 5, v4")
    a.e("v_add_u32 v5, 0x4000, v4")
    for p in range(NPAT):
        a.e(f"v_add_u32 v28, {64*p}, v1")
        a.e(f"v_mul_u32_u24 v29, 0x{DIVM:x}, v28")
        a.e("v_lshrrev_b32 v29, 19, v29")
        a.e(f"v_mul_u32_u24 v30, {CH}, v29")
        a.e("v_sub_u32 v30, v28, v30")
        a.e(f"v_mul_u32_u24 v29, 0x{WROW:x}, v29")
        a.e(f"v_lshl_add_u32 v{6+p}, v30, 4, v29")
    a.e("v_bfe_u32 v28, v0, 2, 2")
    a.e("v_lshl_add_u32 v28, v3, 4, v28")
    a.e(f"v_mul_u32_u24 v28, {PITCH}, v28")
    a.e("v_and_b32 v29, 3, v0")
    a.e("v_lshl_add_u32 v13, v29, 3, v28")
    a.e(f"v_add_u32 v23, 0x{2*CHUNKB:x}, v13")
    a.e("v_mov_b32 v22, 0x3f803f80")
    for k in range(4):
        a.e(f"v_mov_b32 v{24+k}, 0x3f803f80")
    for k in range(4):
        a.e(f"v_mov_b32 v{14+k}, 0")
    BIAS = 120
    BIAS = 40
    if mode == "ffn1":
        a.e("v_lshlrev_b32 v28, 3, v3")
        a.e("s_lshl_b32 s37, s29, 1")
        for j in range(NJ):
            a.e(f"buffer_load_dwordx2 {vr(BIAS+2*j,2)}, v28, s[24:27], s37 offen offset:{32*j}")
    def Areg(t, u, hf):
        return 128 + ((t * 8 + u) * 2 + hf) * 4
    for c in range(4):
        for u in (2 * c, 2 * c + 1):
            for t in range(2):
                for hf in range(2):
                    a.e(f"buffer_load_dwordx4 {vr(Areg(t,u,hf),4)}, v{4+t}, s[12:15], 0 offen offset:{u*128+hf*16}")
        for q in range(ND):
            per, p = divmod(q, NPAT)
            rowoff = 128 * c + per * PERROWS
            a.e(f"s_add_u32 s34, s32, 0x{rowoff*WROW:x}")
            a.e(f"s_add_u32 s35, s33, 0x{rowoff*PITCH + p*1024:x}")
            a.e("s_mov_b32 m0, s35")
            a.nop(1)
            a.e(f"buffer_load_dwordx4 v{6+p}, s[16:19], s34 offen lds")
    GR = 8 + ND
    def acc(t, j):
        return (t * NJ + j) * 4
    ONES = 8 * NJ
    def oacc(j):
        return ONES + j * 4
    def Bf(b, j):
        return 64 + b * 28 + j * 4
    def tr_reads(s):
        u, hf, b = s >> 1, s & 1, s & 1
        c = s >> 2
        base = 13 if c < 2 else 23
        sub = 0 if c < 2 else 2 * CHUNKB
        out = []
        for j in range(NJ):
            for aa in range(2):
                off = (64 * u + 8 * hf + 4 * aa) * PITCH + j * 32 - sub
                out.append(f"ds_read_b64_tr_b16 {vr(Bf(b,j)+2*aa,2)}, v{base} offset:{off}")
        return out
    a.e(f"s_waitcnt vmcnt({3*GR})")
    a.e("s_barrier")
    for r in tr_reads(0):
        a.e(r)
    def step(s, ones):
        u, hf, b = s >> 1, s & 1, s & 1
        c = s >> 2
        a.e("s_waitcnt lgkmcnt(0)")
        nxt = []
        if s + 1 < 16:
            if (s + 1) % 4 == 0:
                a.e(f"s_waitcnt vmcnt({(3-(c+1))*GR})")
                a.e("s_barrier")
            nxt = tr_reads(s + 1)
        st = []
        for t in range(2):
            for k in range(4):
                r = Areg(t, u, hf) + k
                st.append(f"v_dot2_f32_bf16 v{14+2*t}, v{r}, v22, v{14+2*t}")
                st.append(f"v_dot2_f32_bf16 v{15+2*t}, v{r}, v{r}, v{15+2*t}")
        first = (s == 0)
        ofirst = (s % 4 == 0)
        for j in range(NJ):
            for t in range(2):
                cc = "0" if first else ar(acc(t, j), 4)
                a.e(f"v_mfma_f32_16x16x32_bf16 {ar(acc(t,j),4)}, {vr(Bf(b,j),4)}, {vr(Areg(t,u,hf),4)}, {cc}")
                if nxt:
                    a.e(nxt.pop(0))
                for _ in range(2):
                    if st:
                        a.e(st.pop(0))
            if ones:
                cc = "0" if ofirst else ar(oacc(j), 4)
                a.e(f"v_mfma_f32_16x16x32_bf16 {ar(oacc(j),4)}, {vr(Bf(b,j),4)}, v[24:27], {cc}")
        while nxt:
            a.e(nxt.pop(0))
        while st:
            a.e(st.pop(0))
    for c in range(4):
        a.e(f"s_cmp_eq_u32 s30, {c}")
        a.e(f"s_cbranch_scc1 L_{name}_o{c}")
        for s in range(4 * c, 4 * c + 4):
            step(s, False)
        a.e(f"s_branch L_{name}_n{c}")
        a.lab(f"L_{name}_o{c}")
        for s in range(4 * c, 4 * c + 4):
            step(s, True)
        a.lab(f"L_{name}_n{c}")
    a.nop(8)
    a.e("v_lshlrev_b32 v28, 4, v1")
    a.e(f"s_mul_i32 s34, s30, {NJ*1024}")
    a.e(f"s_add_u32 s34, s34, 0x{EX:x}")
    a.e("v_add_u32 v28, s34, v28")
    for j in range(NJ):
        for k in range(4):
            a.e(f"v_accvgpr_read_b32 v{64+j*4+k}, {ar(oacc(j)+k)}")
    a.nop(1)
    for j in range(NJ):
        a.e(f"ds_write_b128 v28, {vr(64+j*4,4)} offset:{j*1024}")
    for x in range(14, 18):
        xreduce_add(a, x, 30, 31)
    for t in range(2):
        a.e(f"v_mul_f32 v{18+2*t}, {f32(1/512)}, v{14+2*t}")
        a.e(f"v_mul_f32 v30, {f32(1/512)}, v{15+2*t}")
        a.e(f"v_fma_f32 v30, -v{18+2*t}, v{18+2*t}, v30")
        a.e("v_max_f32 v30, 0, v30")
        a.e(f"v_add_f32 v30, {f32(1e-5)}, v30")
        a.e(f"v_rsq_f32 v{19+2*t}, v30")
    a.e("s_waitcnt lgkmcnt(0)")
    a.e("s_barrier")
    a.e("v_lshlrev_b32 v28, 4, v1")
    a.e(f"v_add_u32 v28, 0x{EX:x}, v28")
    for j in range(NJ):
        for w in range(4):
            dst = 64 + j * 4 if w == 0 else 128 + (j * 3 + (w - 1)) * 4
            a.e(f"ds_read_b128 {vr(dst,4)}, v28 offset:{(w*NJ+j)*1024}")
    a.e("s_waitcnt lgkmcnt(0)")
    for j in range(NJ):
        for w in range(1, 4):
            for k in range(4):
                a.e(f"v_add_f32 v{64+j*4+k}, v{64+j*4+k}, v{128+(j*3+(w-1))*4+k}")
    if mode == "qkv":
        a.e("v_lshlrev_b32 v28, 5, v2")
        a.e("v_lshl_add_u32 v28, v3, 3, v28")
        a.e("v_add_u32 v29, 512, v28")
        a.e("s_lshl_b32 s38, s31, 5")
    else:
        a.e("v_add_u32 v28, s31, v2")
        a.e("v_mul_u32_u24 v28, 0xe00, v28")
        a.e("v_lshl_add_u32 v28, v3, 3, v28")
        a.e(f"v_add_u32 v29, 0x{16*3584:x}, v28")
        a.e("s_lshl_b32 s38, s29, 1")
        a.e("s_waitcnt vmcnt(0)")
    T = 96
    for j in range(NJ):
        if mode == "qkv":
            a.e(f"s_add_u32 s34, s29, {16*j}")
            a.e("s_lshr_b32 s35, s34, 9")
            a.e("s_bfe_u32 s36, s34, 0x50004")
            a.e("s_lshl_b32 s37, s35, 21")
            a.e("s_lshl_b32 s36, s36, 16")
            a.e("s_add_u32 s37, s37, s36")
            a.e("s_add_u32 s37, s37, s38")
            a.e("s_cmp_eq_u32 s35, 0")
            a.e(f"s_cselect_b32 s39, {f32(QSCALE)}, 1.0")
        for t in range(2):
            for k in range(4):
                a.e(f"v_accvgpr_read_b32 v{T+k}, {ar(acc(t,j)+k)}")
            if mode == "qkv":
                a.e(f"v_mul_f32 v{T+4}, s39, v{19+2*t}")
            else:
                a.e(f"v_lshlrev_b32 v{T+8}, 16, v{BIAS+2*j}")
                a.e(f"v_and_b32 v{T+9}, 0xffff0000, v{BIAS+2*j}")
                a.e(f"v_lshlrev_b32 v{T+10}, 16, v{BIAS+2*j+1}")
                a.e(f"v_and_b32 v{T+11}, 0xffff0000, v{BIAS+2*j+1}")
            for k in range(4):
                a.e(f"v_fma_f32 v{T+k}, -v{18+2*t}, v{64+j*4+k}, v{T+k}")
            for k in range(4):
                if mode == "qkv":
                    a.e(f"v_mul_f32 v{T+k}, v{T+4}, v{T+k}")
                else:
                    a.e(f"v_fma_f32 v{T+k}, v{T+k}, v{19+2*t}, v{T+8+k}")
            if mode == "ffn1":
                c0 = -2 * math.log2(math.e) * 0.7978845608028654
                c1 = c0 * 0.044715
                a.e(f"v_mov_b32 v{T+16}, {f32(c0)}")
                for k in range(4):
                    a.e(f"v_mul_f32 v{T+4+k}, v{T+k}, v{T+k}")
                for k in range(4):
                    a.e(f"v_fmaak_f32 v{T+4+k}, v{T+4+k}, v{T+17}, v{T+16}" if False else
                        f"v_fma_f32 v{T+4+k}, v{T+4+k}, s40, v{T+16}")
                for k in range(4):
                    a.e(f"v_mul_f32 v{T+4+k}, v{T+4+k}, v{T+k}")
                for k in range(4):
                    a.e(f"v_exp_f32 v{T+4+k}, v{T+4+k}")
                for k in range(4):
                    a.e(f"v_add_f32 v{T+4+k}, 1.0, v{T+4+k}")
                for k in range(4):
                    a.e(f"v_rcp_f32 v{T+4+k}, v{T+4+k}")
                for k in range(4):
                    a.e(f"v_mul_f32 v{T+k}, v{T+k}, v{T+4+k}")
            a.e(f"v_cvt_pk_bf16_f32 v{T+12}, v{T}, v{T+1}")
            a.e(f"v_cvt_pk_bf16_f32 v{T+13}, v{T+2}, v{T+3}")
            if mode == "qkv":
                a.e(f"buffer_store_dwordx2 {vr(T+12,2)}, v{28+t}, s[20:23], s37 offen")
            else:
                a.e(f"buffer_store_dwordx2 {vr(T+12,2)}, v{28+t}, s[20:23], s38 offen offset:{32*j}")
            a.nop(2)
    a.lab(f"L_{name}_end")
    a.e("s_endpgm")
    if mode == "ffn1":
        c1 = -2 * math.log2(math.e) * 0.7978845608028654 * 0.044715
        idx = a.L.index("    v_and_b32 v1, 63, v0")
        a.L.insert(idx, f"    s_mov_b32 s40, {f32(c1)}")
    desc = kernel_desc(name, 256 + 8 * NJ + 4 * NJ, 256)
    return a.L, desc, LDS

def gemm_res(name, mode, res, dst):
    a = Asm()
    K = 512 if mode == "wo" else 1792
    AROW = K * 2
    AOFF = WS_O if mode == "wo" else WS_H
    NCH = K // 128
    NS = min(NCH, 9)
    LDS = NS * 16384
    kernel_head(a, name)
    a.e("s_cmp_ge_u32 s2, 256")
    a.e(f"s_cbranch_scc1 L_{name}_end")
    if res == "in":
        a.e(f"s_load_dwordx2 s[4:5], s[0:1], {KA['x']}")
    a.e(f"s_load_dwordx2 s[6:7], s[0:1], {KA['wo'] if mode=='wo' else KA['w2']}")
    a.e(f"s_load_dwordx2 s[8:9], s[0:1], {KA['ws']}")
    if mode == "ffn2":
        a.e(f"s_load_dwordx2 s[10:11], s[0:1], {KA['b2']}")
    if dst == "out":
        a.e(f"s_load_dwordx2 s[40:41], s[0:1], {KA['out']}")
    a.e("v_and_b32 v1, 63, v0")
    a.e("v_and_b32 v2, 15, v0")
    a.e("v_bfe_u32 v3, v0, 4, 2")
    a.e("v_lshrrev_b32 v28, 6, v0")
    a.nop(1)
    a.e("v_readfirstlane_b32 s30, v28")
    a.e("s_and_b32 s34, s2, 7")
    a.e("s_lshr_b32 s35, s2, 3")
    a.e("s_lshr_b32 s36, s35, 3")
    a.e("s_lshl_b32 s34, s34, 2")
    a.e("s_add_u32 s34, s34, s36")
    a.e("s_and_b32 s35, s35, 7")
    a.e("s_lshl_b32 s28, s34, 6")
    a.e("s_lshl_b32 s29, s35, 6")
    a.e("s_lshl_b32 s36, s30, 4")
    a.e("s_add_u32 s31, s28, s36")
    a.e("s_lshl_b32 s36, s30, 5")
    a.e("s_lshl_b32 s32, s36, 10")
    a.e("s_lshl_b32 s37, s29, 1")
    a.e("s_add_u32 s32, s32, s37")
    a.e("s_lshl_b32 s33, s36, 7")
    a.e("s_waitcnt lgkmcnt(0)")
    srd(a, 12, 8, 2048 * AROW, AOFF)
    srd(a, 16, 6, K * 1024)
    if dst == "out":
        srd(a, 20, 40, 2 * MB)
    else:
        srd(a, 20, 8, 2 * MB, dst)
    if res == "in":
        srd(a, 24, 4, 2 * MB)
    else:
        srd(a, 24, 8, 2 * MB, res)
    if mode == "ffn2":
        srd(a, 44, 10, 1024)
    a.e("v_add_u32 v4, s31, v2")
    a.e(f"v_mul_u32_u24 v4, 0x{AROW:x}, v4")
    a.e("v_lshl_add_u32 v4, v3, 5, v4")
    a.e("v_add_u32 v5, s31, v2")
    a.e("v_lshlrev_b32 v5, 10, v5")
    a.e("v_lshl_add_u32 v5, v3, 3, v5")
    a.e("s_lshl_b32 s38, s29, 1")
    RES, BIAS = 40, 48
    for j in range(4):
        a.e(f"buffer_load_dwordx2 {vr(RES+2*j,2)}, v5, s[24:27], s38 offen offset:{32*j}")
    if mode == "ffn2":
        a.e("v_lshlrev_b32 v28, 3, v3")
        for j in range(4):
            a.e(f"buffer_load_dwordx2 {vr(BIAS+2*j,2)}, v28, s[44:47], s38 offen offset:{32*j}")
    a.e("v_lshrrev_b32 v28, 3, v1")
    a.e("v_bfe_u32 v29, v1, 4, 1")
    a.e("v_bfe_u32 v30, v1, 1, 2")
    a.e("v_xor_b32 v30, v30, v29")
    a.e("v_and_b32 v31, 1, v1")
    a.e("v_lshl_add_u32 v31, v30, 1, v31")
    a.e("v_lshlrev_b32 v28, 10, v28")
    a.e("v_lshl_add_u32 v6, v31, 4, v28")
    a.e("v_xor_b32 v31, 4, v31")
    a.e("v_lshl_add_u32 v7, v31, 4, v28")
    a.e("v_bfe_u32 v28, v0, 2, 2")
    a.e("v_lshl_add_u32 v29, v3, 4, v28")
    a.e("v_lshlrev_b32 v29, 7, v29")
    a.e("v_and_b32 v30, 3, v0")
    a.e("v_lshl_add_u32 v29, v30, 3, v29")
    a.e("v_lshrrev_b32 v28, 1, v28")
    a.e("v_and_b32 v30, 1, v3")
    a.e("v_lshl_add_u32 v28, v30, 1, v28")
    for j in range(4):
        a.e(f"v_xor_b32 v30, {j}, v28")
        a.e(f"v_lshl_add_u32 v{8+j}, v30, 5, v29")
    def Areg(u, hf):
        return (u * 2 + hf) * 4
    def issue_group(c):
        for u in (2 * c, 2 * c + 1):
            for hf in range(2):
                off = u * 128 + hf * 16
                if off < 4096:
                    a.e(f"buffer_load_dwordx4 {ar(Areg(u,hf),4)}, v4, s[12:15], 0 offen offset:{off}")
                else:
                    a.e(f"s_mov_b32 s39, {off}")
                    a.e(f"buffer_load_dwordx4 {ar(Areg(u,hf),4)}, v4, s[12:15], s39 offen")
        slot = c % NS
        for q in range(4):
            a.e(f"s_add_u32 s34, s32, 0x{(128*c+8*q)*1024:x}")
            a.e(f"s_add_u32 s35, s33, 0x{slot*16384 + 8*q*128:x}")
            a.e("s_mov_b32 m0, s35")
            a.nop(1)
            a.e(f"buffer_load_dwordx4 v{6+(q>>1)}, s[16:19], s34 offen lds")
    for c in range(NS):
        issue_group(c)
    ACC = 16
    def Bf(b, j):
        return 64 + b * 16 + j * 4
    state = {"sub": 0}
    def tr_reads(s):
        u, hf, b = s >> 1, s & 1, s & 1
        c = s >> 2
        slot = c % NS
        out = []
        base_off = slot * 16384
        want_sub = (base_off // 49152) * 49152
        if want_sub != state["sub"]:
            d = want_sub - state["sub"]
            for j in range(4):
                out.append(f"v_add_u32 v{8+j}, 0x{d & 0xffffffff:x}, v{8+j}")
            state["sub"] = want_sub
        for j in range(4):
            for aa in range(2):
                off = base_off + (64 * (u & 1) + 8 * hf + 4 * aa) * 128 - state["sub"]
                out.append(f"ds_read_b64_tr_b16 {vr(Bf(b,j)+2*aa,2)}, v{8+j} offset:{off}")
        return out
    NST = NCH * 4
    def outstanding_after(cwait, issued_upto):
        return min(63, (issued_upto - cwait) * 8)
    a.e(f"s_waitcnt vmcnt({outstanding_after(0, NS-1)})")
    a.e("s_barrier")
    for r in tr_reads(0):
        a.e(r)
    issued = NS - 1
    for s in range(NST):
        u, hf, b = s >> 1, s & 1, s & 1
        c = s >> 2
        a.e("s_waitcnt lgkmcnt(0)")
        nxt = []
        if s + 1 < NST:
            if (s + 1) % 4 == 0:
                a.e(f"s_waitcnt vmcnt({outstanding_after(c+1, issued)})")
                a.e("s_barrier")
                if issued + 1 < NCH:
                    issued += 1
                    issue_group(issued)
            nxt = tr_reads(s + 1)
        for j in range(4):
            cc = "0" if s == 0 else vr(ACC + 4 * j, 4)
            a.e(f"v_mfma_f32_16x16x32_bf16 {vr(ACC+4*j,4)}, {vr(Bf(b,j),4)}, {ar(Areg(u,hf),4)}, {cc}")
            for _ in range(3):
                if nxt:
                    a.e(nxt.pop(0))
        while nxt:
            a.e(nxt.pop(0))
    a.nop(8)
    T = 96
    for j in range(4):
        a.e(f"v_lshlrev_b32 v{T}, 16, v{RES+2*j}")
        a.e(f"v_and_b32 v{T+1}, 0xffff0000, v{RES+2*j}")
        a.e(f"v_lshlrev_b32 v{T+2}, 16, v{RES+2*j+1}")
        a.e(f"v_and_b32 v{T+3}, 0xffff0000, v{RES+2*j+1}")
        for k in range(4):
            a.e(f"v_add_f32 v{ACC+4*j+k}, v{ACC+4*j+k}, v{T+k}")
        if mode == "ffn2":
            a.e(f"v_lshlrev_b32 v{T}, 16, v{BIAS+2*j}")
            a.e(f"v_and_b32 v{T+1}, 0xffff0000, v{BIAS+2*j}")
            a.e(f"v_lshlrev_b32 v{T+2}, 16, v{BIAS+2*j+1}")
            a.e(f"v_and_b32 v{T+3}, 0xffff0000, v{BIAS+2*j+1}")
            for k in range(4):
                a.e(f"v_add_f32 v{ACC+4*j+k}, v{ACC+4*j+k}, v{T+k}")
        a.e(f"v_cvt_pk_bf16_f32 v{T+4+2*j}, v{ACC+4*j}, v{ACC+4*j+1}")
        a.e(f"v_cvt_pk_bf16_f32 v{T+5+2*j}, v{ACC+4*j+2}, v{ACC+4*j+3}")
        a.e(f"buffer_store_dwordx2 {vr(T+4+2*j,2)}, v5, s[20:23], s38 offen offset:{32*j}")
    a.lab(f"L_{name}_end")
    a.e("s_endpgm")
    nagpr = (K // 64) * 8
    desc = kernel_desc(name, 128 + nagpr, 128)
    return a.L, desc, LDS

def attn(name):
    a = Asm()
    U = 4
    CONST = 131072
    NCROWS = (U + 1) * 32 + 8
    LDS = CONST + NCROWS * 32
    kernel_head(a, name)
    a.e("s_cmp_ge_u32 s2, 256")
    a.e(f"s_cbranch_scc1 L_{name}_end")
    a.e(f"s_load_dwordx2 s[4:5], s[0:1], {KA['ws']}")
    a.e("v_and_b32 v1, 63, v0")
    a.e("v_lshrrev_b32 v114, 6, v0")
    a.nop(1)
    a.e("v_readfirstlane_b32 s30, v114")
    a.e("s_and_b32 s34, s2, 7")
    a.e("s_lshr_b32 s35, s2, 3")
    a.e("s_lshr_b32 s36, s35, 3")
    a.e("s_lshl_b32 s34, s34, 2")
    a.e("s_add_u32 s28, s34, s36")
    a.e("s_and_b32 s29, s35, 7")
    a.e("s_lshl_b32 s31, s28, 16")
    a.e("s_waitcnt lgkmcnt(0)")
    srd(a, 8, 4, 6 * MB)
    srd(a, 12, 4, 2 * MB, WS_O)
    a.e("v_lshlrev_b32 v114, 4, v1")
    a.e("s_lshl_b32 s32, s30, 13")
    for sec, (wsoff, ldsoff) in enumerate(((WS_K, 0), (WS_V, 65536))):
        for i in range(8):
            a.e(f"s_add_u32 s34, s31, s32")
            a.e(f"s_add_u32 s34, s34, 0x{wsoff + i*1024:x}")
            a.e(f"s_add_u32 s35, s32, 0x{ldsoff + i*1024:x}")
            a.e("s_mov_b32 m0, s35")
            a.nop(1)
            a.e("buffer_load_dwordx4 v114, s[8:11], s34 offen lds")
        if sec == 0:
            a.e("v_and_b32 v115, 31, v0")
            a.e("v_lshlrev_b32 v115, 5, v115")
            a.e("v_bfe_u32 v116, v0, 5, 1")
            a.e("v_lshl_add_u32 v2, v116, 4, v115")
            a.e("s_lshl_b32 s36, s29, 13")
            a.e("s_lshl_b32 s37, s30, 10")
            a.e("s_add_u32 s36, s36, s37")
            a.e("s_add_u32 s36, s36, s31")
            a.e("buffer_load_dwordx4 v[8:11], v2, s[8:11], s36 offen")
    a.e(f"v_cmp_gt_u32 vcc, {NCROWS}, v0")
    a.e("v_mov_b32 v116, 0x3f80")
    a.e("v_mov_b32 v117, 0")
    a.e("v_mov_b32 v118, 0")
    a.e("v_mov_b32 v119, 0")
    a.e("v_mov_b32 v120, 0")
    a.e("v_mov_b32 v121, 0")
    a.e("v_mov_b32 v122, 0")
    a.e("v_mov_b32 v123, 0")
    a.e("v_lshlrev_b32 v115, 5, v0")
    a.e(f"v_add_u32 v115, 0x{CONST:x}, v115")
    a.e("s_and_saveexec_b64 s[40:41], vcc")
    a.e(f"s_cbranch_execz L_{name}_nofill")
    a.e("ds_write_b128 v115, v[116:119]")
    a.e("ds_write_b128 v115, v[120:123] offset:16")
    a.lab(f"L_{name}_nofill")
    a.e("s_mov_b64 exec, s[40:41]")
    a.e("v_bfe_u32 v115, v0, 2, 2")
    a.e("v_and_b32 v116, 3, v0")
    a.e("v_lshlrev_b32 v115, 5, v115")
    a.e("v_lshl_add_u32 v115, v116, 3, v115")
    a.e("v_bfe_u32 v116, v0, 5, 1")
    a.e("v_lshlrev_b32 v117, 7, v116")
    a.e("v_add_u32 v118, 0x10000, v117")
    a.e(f"v_sub_u32 v119, 0x{CONST+128:x}, v117")
    a.e("v_bfe_u32 v116, v0, 4, 1")
    a.e("v_cmp_eq_u32 vcc, 1, v116")
    a.e(f"v_mov_b32 v120, {U*1024}")
    a.nop(2)
    a.e("v_cndmask_b32 v118, v118, v119, vcc")
    a.e("v_cndmask_b32 v4, v120, 0, vcc") if False else None
    a.e("v_mov_b32 v121, 0")
    a.e("v_cndmask_b32 v4, v120, v121, vcc")
    a.e("v_add_u32 v3, v118, v115")
    for k in range(16):
        a.e(f"v_mov_b32 v{48+k}, 0xff7fffff")
    a.e("v_mov_b32 v112, 0xff7fffff")
    a.e("v_mov_b32 v113, 0xff7fffff")
    S = (32, 48)
    Kf = (72, 76)
    Vf = (80, 88)
    a.e("s_waitcnt vmcnt(8)")
    a.e("s_barrier")
    a.e("v_mov_b32 v5, v2")
    a.e(f"ds_read_b128 {vr(Kf[0],4)}, v5")
    a.e(f"ds_read_b128 {vr(Kf[1],4)}, v5 offset:1024")
    a.e("s_mov_b32 s33, 16")
    def maxes(sb):
        for k in range(0, 16, 4):
            a.e(f"v_max3_f32 v112, v{sb+k}, v{sb+k+1}, v112")
            a.e(f"v_max3_f32 v113, v{sb+k+2}, v{sb+k+3}, v113")
    a.lab(f"L_{name}_p1")
    for tt in range(U):
        b = tt & 1
        a.e("s_waitcnt lgkmcnt(1)")
        a.e(f"v_mfma_f32_32x32x16_bf16 {vr(S[b],16)}, {vr(Kf[b],4)}, v[8:11], 0")
        a.e(f"ds_read_b128 {vr(Kf[b],4)}, v5 offset:{(tt+2)*1024}")
        a.nop(1)
        maxes(S[b ^ 1])
    a.e(f"v_add_u32 v5, {U*1024}, v5")
    a.e("s_sub_u32 s33, s33, 1")
    a.e("s_cmp_lg_u32 s33, 0")
    a.e(f"s_cbranch_scc1 L_{name}_p1")
    a.nop(12)
    maxes(S[1])
    a.e("v_max_f32 v112, v112, v113")
    a.nop(1)
    a.e("v_mov_b32 v113, v112")
    a.nop(2)
    a.e("v_permlane32_swap_b32 v112, v113")
    a.nop(2)
    a.e("v_max_f32 v112, v112, v113")
    a.e("v_sub_f32 v112, 0, v112")
    for k in range(16):
        a.e(f"v_mov_b32 v{16+k}, v112")
    for k in range(16):
        a.e(f"v_mov_b32 v{96+k}, 0")
    a.e("s_waitcnt vmcnt(0) lgkmcnt(0)")
    a.e("s_barrier")
    a.e("v_mov_b32 v5, v2")
    a.e(f"ds_read_b128 {vr(Kf[0],4)}, v5")
    a.e("s_waitcnt lgkmcnt(0)")
    a.e(f"v_mfma_f32_32x32x16_bf16 {vr(S[0],16)}, {vr(Kf[0],4)}, v[8:11], v[16:31]")
    a.e(f"ds_read_b128 {vr(Kf[1],4)}, v5 offset:1024")
    def vreads(buf, tile_imm):
        out = []
        for m in range(2):
            for aa in range(2):
                out.append(f"ds_read_b64_tr_b16 {vr(Vf[buf]+4*m+2*aa,2)}, v3 offset:{tile_imm*1024 + (16*m+8*aa)*32}")
        return out
    for r in vreads(0, 0):
        a.e(r)
    a.e("s_mov_b32 s33, 16")
    a.nop(4)
    a.lab(f"L_{name}_p2")
    for tt in range(U):
        b = tt & 1
        sb = S[b]
        a.e("s_waitcnt lgkmcnt(4)")
        a.e(f"v_mfma_f32_32x32x16_bf16 {vr(S[b^1],16)}, {vr(Kf[b^1],4)}, v[8:11], v[16:31]")
        a.e(f"ds_read_b128 {vr(Kf[b],4)}, v5 offset:{(tt+2)*1024}")
        vr_list = vreads(b ^ 1, tt + 1)
        for half in range(2):
            o = 8 * half
            a.e(f"v_exp_f32 v{sb+o}, v{sb+o}")
            a.e(f"v_exp_f32 v{sb+o+1}, v{sb+o+1}")
            a.e(f"v_exp_f32 v{sb+o+2}, v{sb+o+2}")
            a.e(f"v_exp_f32 v{sb+o+3}, v{sb+o+3}")
            a.e(f"v_cvt_pk_bf16_f32 v{64+4*half}, v{sb+o}, v{sb+o+1}")
            a.e(f"v_exp_f32 v{sb+o+4}, v{sb+o+4}")
            a.e(f"v_exp_f32 v{sb+o+5}, v{sb+o+5}")
            a.e(f"v_cvt_pk_bf16_f32 v{65+4*half}, v{sb+o+2}, v{sb+o+3}")
            a.e(f"v_exp_f32 v{sb+o+6}, v{sb+o+6}")
            a.e(f"v_exp_f32 v{sb+o+7}, v{sb+o+7}")
            a.e(f"v_cvt_pk_bf16_f32 v{66+4*half}, v{sb+o+4}, v{sb+o+5}")
            if half == 0:
                a.e(vr_list[0]); a.e(vr_list[1])
            a.e(f"v_cvt_pk_bf16_f32 v{67+4*half}, v{sb+o+6}, v{sb+o+7}") if half == 1 else None
            if half == 0:
                a.e(f"v_cvt_pk_bf16_f32 v{67}, v{sb+6}, v{sb+7}")
                a.e(vr_list[2]); a.e(vr_list[3])
                a.e("s_waitcnt lgkmcnt(5)")
            else:
                a.nop(2)
            a.e(f"v_mfma_f32_32x32x16_bf16 v[96:111], {vr(Vf[b]+4*half,4)}, {vr(64+4*half,4)}, v[96:111]")
    a.e(f"v_add_u32 v5, {U*1024}, v5")
    a.e("v_add_u32 v3, v4, v3")
    a.e("s_sub_u32 s33, s33, 1")
    a.e("s_cmp_lg_u32 s33, 0")
    a.e(f"s_cbranch_scc1 L_{name}_p2")
    a.nop(16)
    a.e("v_mov_b32 v112, v104")
    a.e("v_mov_b32 v113, v104")
    a.nop(2)
    a.e("v_permlane32_swap_b32 v112, v113")
    a.nop(2)
    a.e("v_rcp_f32 v112, v112")
    a.nop(1)
    for k in range(8):
        a.e(f"v_mul_f32 v{96+k}, v{96+k}, v112")
    for k in range(4):
        a.e(f"v_cvt_pk_bf16_f32 v{116+k}, v{96+2*k}, v{97+2*k}")
    a.e("v_and_b32 v114, 31, v0")
    a.e("v_lshlrev_b32 v114, 10, v114")
    a.e("v_bfe_u32 v115, v0, 5, 1")
    a.e("v_lshl_add_u32 v114, v115, 3, v114")
    a.e("s_lshl_b32 s36, s29, 18")
    a.e("s_lshl_b32 s37, s30, 15")
    a.e("s_add_u32 s36, s36, s37")
    a.e("s_lshl_b32 s37, s28, 5")
    a.e("s_add_u32 s36, s36, s37")
    a.e("buffer_store_dwordx2 v[116:117], v114, s[12:15], s36 offen")
    a.e("buffer_store_dwordx2 v[118:119], v114, s[12:15], s36 offen offset:16")
    a.lab(f"L_{name}_end")
    a.e("s_endpgm")
    desc = kernel_desc(name, 128, 128)
    return a.L, desc, LDS

def main(outpath, nlaunch=None):
    ks = []
    ks.append(("qkv0_kernel", 256) + gemm_ln("qkv0_kernel", "qkv", "in"))
    ks.append(("attn_kernel", 512) + attn("attn_kernel"))
    ks.append(("wo0_kernel", 256) + gemm_res("wo0_kernel", "wo", "in", WS_X1))
    ks.append(("ffn1_kernel", 256) + gemm_ln("ffn1_kernel", "ffn1", WS_X1))
    ks.append(("ffn2a_kernel", 256) + gemm_res("ffn2a_kernel", "ffn2", WS_X1, WS_X2))
    ks.append(("qkv1_kernel", 256) + gemm_ln("qkv1_kernel", "qkv", WS_X2))
    ks.append(("wo1_kernel", 256) + gemm_res("wo1_kernel", "wo", WS_X2, WS_X1))
    ks.append(("ffn2b_kernel", 256) + gemm_res("ffn2b_kernel", "ffn2", WS_X1, "out"))
    d = {k[0]: k for k in ks}
    order = ["qkv0_kernel", "attn_kernel", "wo0_kernel", "ffn1_kernel", "ffn2a_kernel",
             "qkv1_kernel", "attn_kernel", "wo1_kernel", "ffn1_kernel", "ffn2b_kernel"]
    if nlaunch:
        order = order[:nlaunch]
    ref = open(f"cdna_kernels/{NAME}.s.ref").read().splitlines()
    head = [l for l in ref if l.startswith(";") and "@launch" not in l and "Override" not in l and "grid=ceil" not in l]
    out = list(head)
    for n in order:
        k = d[n]
        out.append(f"; @launch kernel={n} grid=(256,1,1) block=({k[1]},1,1) lds={k[4]}")
    out.append('.amdgcn_target "amdgcn-amd-amdhsa--gfx950"')
    out.append(".text")
    for k in ks:
        out += k[2]
    out.append('.section .rodata,"a"')
    for k in ks:
        out.append(k[3])
    open(outpath, "w").write("\n".join(out) + "\n")

if __name__ == "__main__":
    main(sys.argv[1] if len(sys.argv) > 1 else f"cdna_kernels/{NAME}.s",
         int(sys.argv[2]) if len(sys.argv) > 2 else None)
```

```python
from gen import *
import gen

def attn2(name, slot=0):
    a = Asm()
    U = 4
    CONST = 131072
    NCROWS = (U + 1) * 32 + 8
    KMX = CONST + NCROWS * 32
    LDS = KMX + 64
    kernel_head(a, name)
    a.e("s_cmp_ge_u32 s2, 256")
    a.e(f"s_cbranch_scc1 L_{name}_end")
    stamp(a, 0)
    a.e(f"s_load_dwordx2 s[4:5], s[0:1], {KA['ws']}")
    a.e("v_and_b32 v1, 63, v0")
    a.e("v_lshrrev_b32 v114, 6, v0")
    a.nop(1)
    a.e("v_readfirstlane_b32 s30, v114")
    a.e("s_and_b32 s34, s2, 7")
    a.e("s_lshr_b32 s35, s2, 3")
    a.e("s_lshr_b32 s36, s35, 3")
    a.e("s_lshl_b32 s34, s34, 2")
    a.e("s_add_u32 s28, s34, s36")
    a.e("s_and_b32 s29, s35, 7")
    a.e("s_lshl_b32 s31, s28, 16")
    a.e("v_lshlrev_b32 v114, 4, v1")
    a.e("s_lshl_b32 s32, s30, 13")
    a.e("s_waitcnt lgkmcnt(0)")
    srd(a, 8, 4, 6 * MB)
    srd(a, 12, 4, 2 * MB, WS_O)
    a.e("s_add_u32 s38, s31, s32")
    for i in range(8):
        a.e(f"s_add_u32 s34, s38, 0x{WS_K + i*1024:x}")
        a.e(f"s_add_u32 m0, s32, 0x{i*1024:x}")
        a.nop(1)
        a.e("buffer_load_dwordx4 v114, s[8:11], s34 offen lds")
    a.e("v_and_b32 v115, 31, v0")
    a.e("v_lshlrev_b32 v115, 5, v115")
    a.e("v_bfe_u32 v116, v0, 5, 1")
    a.e("v_lshl_add_u32 v2, v116, 4, v115")
    a.e("s_lshl_b32 s36, s29, 13")
    a.e("s_lshl_b32 s37, s30, 10")
    a.e("s_add_u32 s36, s36, s37")
    a.e("s_add_u32 s36, s36, s31")
    a.e("buffer_load_dwordx4 v[8:11], v2, s[8:11], s36 offen")
    a.e("s_lshl_b32 s37, s30, 11")
    a.e("s_add_u32 s38, s31, s37")
    for qd in range(4):
        for i in range(2):
            a.e(f"s_add_u32 s34, s38, 0x{WS_V + qd*16384 + i*1024:x}")
            a.e(f"s_add_u32 m0, s37, 0x{65536 + qd*16384 + i*1024:x}")
            a.nop(1)
            a.e("buffer_load_dwordx4 v114, s[8:11], s34 offen lds")
    a.e(f"v_cmp_gt_u32 vcc, {NCROWS}, v0")
    a.e("v_mov_b32 v116, 0x3f80")
    for k in range(117, 124):
        a.e(f"v_mov_b32 v{k}, 0")
    a.e("v_lshlrev_b32 v115, 5, v0")
    a.e(f"v_add_u32 v115, 0x{CONST:x}, v115")
    a.e("s_and_saveexec_b64 s[40:41], vcc")
    a.e(f"s_cbranch_execz L_{name}_nofill")
    a.e("ds_write_b128 v115, v[116:119]")
    a.e("ds_write_b128 v115, v[120:123] offset:16")
    a.lab(f"L_{name}_nofill")
    a.e("s_mov_b64 exec, s[40:41]")
    a.e("v_bfe_u32 v115, v0, 2, 2")
    a.e("v_and_b32 v116, 3, v0")
    a.e("v_lshlrev_b32 v115, 5, v115")
    a.e("v_lshl_add_u32 v115, v116, 3, v115")
    a.e("v_bfe_u32 v116, v0, 5, 1")
    a.e("v_lshlrev_b32 v117, 7, v116")
    a.e("v_add_u32 v118, 0x10000, v117")
    a.e(f"v_sub_u32 v119, 0x{CONST+128:x}, v117")
    a.e("v_bfe_u32 v116, v0, 4, 1")
    a.e("v_cmp_eq_u32 vcc, 1, v116")
    a.e(f"v_mov_b32 v120, {U*1024}")
    a.e("v_mov_b32 v121, 0")
    a.nop(1)
    a.e("v_cndmask_b32 v118, v118, v119, vcc")
    a.e("v_cndmask_b32 v4, v120, v121, vcc")
    a.e("v_add_u32 v6, v118, v115")
    S = (32, 48)
    Kf = (72, 76)
    Vf = (80, 88)
    a.e("s_mov_b32 s42, 0")
    a.e("s_waitcnt vmcnt(8)")
    a.e("s_barrier")
    stamp(a, 1)
    a.e("v_lshlrev_b32 v115, 5, v0")
    for i in range(4):
        a.e(f"ds_read_b128 {vr(32+8*i,4)}, v115 offset:{i*16384}")
        a.e(f"ds_read_b128 {vr(36+8*i,4)}, v115 offset:{i*16384+16}")
    a.e("v_mov_b32 v116, 0")
    for k in range(4):
        a.e(f"v_dot2_f32_bf16 v116, v{8+k}, v{8+k}, v116")
    for i in range(4):
        a.e(f"v_mov_b32 v{64+i}, 0")
    a.e("s_waitcnt lgkmcnt(0)")
    for i in range(4):
        for k in range(8):
            a.e(f"v_dot2_f32_bf16 v{64+i}, v{32+8*i+k}, v{32+8*i+k}, v{64+i}")
    a.nop(3)
    a.e("v_max_f32 v64, v64, v65")
    a.e("v_max_f32 v66, v66, v67")
    a.e("v_max_f32 v64, v64, v66")
    a.nop(1)
    a.e("v_mov_b32 v65, v64")
    a.nop(2)
    a.e("v_permlane32_swap_b32 v64, v65")
    a.nop(2)
    a.e("v_max_f32 v64, v64, v65")
    a.nop(1)
    a.e("v_mov_b32 v65, v64")
    a.nop(2)
    a.e("v_permlane16_swap_b32 v64, v65")
    a.nop(2)
    a.e("v_max_f32 v64, v64, v65")
    for x in (1, 2, 4, 8):
        a.e(f"ds_swizzle_b32 v65, v64 offset:0x{(x<<10)|0x1f:x}")
        a.e("s_waitcnt lgkmcnt(0)")
        a.e("v_max_f32 v64, v64, v65")
    a.e("s_lshl_b32 s34, s30, 2")
    a.e(f"s_add_u32 s34, s34, 0x{KMX:x}")
    a.e("v_mov_b32 v65, s34")
    a.e("ds_write_b32 v65, v64")
    a.e("v_mov_b32 v117, v116")
    a.nop(2)
    a.e("v_permlane32_swap_b32 v116, v117")
    a.nop(2)
    a.e("v_add_f32 v116, v116, v117")
    a.e("s_waitcnt vmcnt(6) lgkmcnt(0)")
    a.e("s_barrier")
    a.e(f"v_mov_b32 v65, 0x{KMX:x}")
    a.e("ds_read_b128 v[32:35], v65")
    a.e("ds_read_b128 v[36:39], v65 offset:16")
    a.e("s_waitcnt lgkmcnt(0)")
    a.e("v_max3_f32 v32, v32, v33, v34")
    a.e("v_max3_f32 v36, v36, v37, v38")
    a.e("v_max3_f32 v32, v32, v35, v39")
    a.e("v_max_f32 v32, v32, v36")
    a.e("v_mul_f32 v116, v116, v32")
    a.e("v_sqrt_f32 v116, v116")
    a.nop(1)
    a.e(f"v_mul_f32 v112, {f32(-(1.0 + 2.0**-7))}, v116")
    stamp(a, 2)
    a.lab(f"L_{name}_main")
    for k in range(16):
        a.e(f"v_mov_b32 v{16+k}, v112")
    for k in range(16):
        a.e(f"v_mov_b32 v{96+k}, 0")
    a.e("v_mov_b32 v5, v2")
    a.e("v_mov_b32 v3, v6")
    a.e(f"ds_read_b128 {vr(Kf[0],4)}, v5")
    a.e("s_waitcnt lgkmcnt(0)")
    a.e(f"v_mfma_f32_32x32x16_bf16 {vr(S[0],16)}, {vr(Kf[0],4)}, v[8:11], v[16:31]")
    a.e(f"ds_read_b128 {vr(Kf[1],4)}, v5 offset:1024")
    def vreads(buf, tile_imm):
        out = []
        for m in range(2):
            for aa in range(2):
                out.append(f"ds_read_b64_tr_b16 {vr(Vf[buf]+4*m+2*aa,2)}, v3 offset:{tile_imm*1024 + (16*m+8*aa)*32}")
        return out
    for r in vreads(0, 0):
        a.e(r)
    a.e("s_mov_b32 s33, 0")
    a.nop(4)
    a.lab(f"L_{name}_p2")
    a.e("s_and_b32 s34, s33, 3")
    a.e("s_or_b32 s34, s34, s42")
    a.e("s_cmp_lg_u32 s34, 3")
    a.e(f"s_cbranch_scc1 L_{name}_nob")
    a.e("s_cmp_eq_u32 s33, 15")
    a.e(f"s_cbranch_scc1 L_{name}_nob")
    a.e("s_cmp_eq_u32 s33, 3")
    a.e(f"s_cbranch_scc1 L_{name}_w4")
    a.e("s_cmp_eq_u32 s33, 7")
    a.e(f"s_cbranch_scc1 L_{name}_w2")
    a.e("s_waitcnt vmcnt(0)")
    a.e(f"s_branch L_{name}_bar")
    a.lab(f"L_{name}_w4")
    a.e("s_waitcnt vmcnt(4)")
    a.e(f"s_branch L_{name}_bar")
    a.lab(f"L_{name}_w2")
    a.e("s_waitcnt vmcnt(2)")
    a.lab(f"L_{name}_bar")
    a.e("s_barrier")
    a.lab(f"L_{name}_nob")
    for tt in range(U):
        b = tt & 1
        sb = S[b]
        a.e("s_waitcnt lgkmcnt(4)")
        a.e(f"v_mfma_f32_32x32x16_bf16 {vr(S[b^1],16)}, {vr(Kf[b^1],4)}, v[8:11], v[16:31]")
        a.e(f"ds_read_b128 {vr(Kf[b],4)}, v5 offset:{(tt+2)*1024}")
        vl = vreads(b ^ 1, tt + 1)
        for half in range(2):
            o = 8 * half
            a.e(f"v_exp_f32 v{sb+o}, v{sb+o}")
            a.e(f"v_exp_f32 v{sb+o+1}, v{sb+o+1}")
            a.e(f"v_exp_f32 v{sb+o+2}, v{sb+o+2}")
            a.e(f"v_exp_f32 v{sb+o+3}, v{sb+o+3}")
            a.e(f"v_cvt_pk_bf16_f32 v{64+4*half}, v{sb+o}, v{sb+o+1}")
            a.e(f"v_exp_f32 v{sb+o+4}, v{sb+o+4}")
            a.e(f"v_exp_f32 v{sb+o+5}, v{sb+o+5}")
            a.e(f"v_cvt_pk_bf16_f32 v{65+4*half}, v{sb+o+2}, v{sb+o+3}")
            a.e(f"v_exp_f32 v{sb+o+6}, v{sb+o+6}")
            a.e(f"v_exp_f32 v{sb+o+7}, v{sb+o+7}")
            a.e(f"v_cvt_pk_bf16_f32 v{66+4*half}, v{sb+o+4}, v{sb+o+5}")
            if half == 0:
                a.e(vl[0]); a.e(vl[1])
                a.e(f"v_cvt_pk_bf16_f32 v67, v{sb+6}, v{sb+7}")
                a.e(vl[2]); a.e(vl[3])
                a.e("s_waitcnt lgkmcnt(5)")
            else:
                a.e(f"v_cvt_pk_bf16_f32 v71, v{sb+14}, v{sb+15}")
                a.nop(2)
            a.e(f"v_mfma_f32_32x32x16_bf16 v[96:111], {vr(Vf[b]+4*half,4)}, {vr(64+4*half,4)}, v[96:111]")
    a.e(f"v_add_u32 v5, {U*1024}, v5")
    a.e("v_add_u32 v3, v4, v3")
    a.e("s_add_u32 s33, s33, 1")
    a.e("s_cmp_lg_u32 s33, 16")
    a.e(f"s_cbranch_scc1 L_{name}_p2")
    stamp(a, 4)
    a.nop(16)
    a.e("v_mov_b32 v113, v104")
    a.e("v_mov_b32 v114, v104")
    a.nop(2)
    a.e("v_permlane32_swap_b32 v113, v114")
    a.nop(2)
    a.e("s_cmp_lg_u32 s42, 0")
    a.e(f"s_cbranch_scc1 L_{name}_fin")
    a.e(f"v_cmp_nge_f32 vcc, v113, v115") if False else None
    import os
    a.e(f"v_mov_b32 v115, {f32(1e30 if os.environ.get('FORCE_FB') else 2.0**-64)}")
    a.e("v_cmp_nge_f32 vcc, v113, v115")
    a.nop(5)
    a.e(f"s_cbranch_vccz L_{name}_fin")
    a.e("s_mov_b32 s42, 16")
    for k in range(16):
        a.e(f"v_mov_b32 v{48+k}, 0xff7fffff")
    a.e("v_mov_b32 v112, 0xff7fffff")
    a.e("v_mov_b32 v113, 0xff7fffff")
    a.e("s_waitcnt lgkmcnt(0)")
    a.e("v_mov_b32 v5, v2")
    a.e(f"ds_read_b128 {vr(Kf[0],4)}, v5")
    a.e(f"ds_read_b128 {vr(Kf[1],4)}, v5 offset:1024")
    a.e("s_mov_b32 s33, 16")
    def maxes(sb):
        for k in range(0, 16, 4):
            a.e(f"v_max3_f32 v112, v{sb+k}, v{sb+k+1}, v112")
            a.e(f"v_max3_f32 v113, v{sb+k+2}, v{sb+k+3}, v113")
    a.lab(f"L_{name}_p1")
    for tt in range(U):
        b = tt & 1
        a.e("s_waitcnt lgkmcnt(1)")
        a.e(f"v_mfma_f32_32x32x16_bf16 {vr(S[b],16)}, {vr(Kf[b],4)}, v[8:11], 0")
        a.e(f"ds_read_b128 {vr(Kf[b],4)}, v5 offset:{(tt+2)*1024}")
        a.nop(1)
        maxes(S[b ^ 1])
    a.e(f"v_add_u32 v5, {U*1024}, v5")
    a.e("s_sub_u32 s33, s33, 1")
    a.e("s_cmp_lg_u32 s33, 0")
    a.e(f"s_cbranch_scc1 L_{name}_p1")
    a.nop(12)
    maxes(S[1])
    a.e("v_max_f32 v112, v112, v113")
    a.nop(1)
    a.e("v_mov_b32 v113, v112")
    a.nop(2)
    a.e("v_permlane32_swap_b32 v112, v113")
    a.nop(2)
    a.e("v_max_f32 v112, v112, v113")
    a.e("v_sub_f32 v112, 0, v112")
    a.e("s_waitcnt lgkmcnt(0)")
    a.e(f"s_branch L_{name}_main")
    a.lab(f"L_{name}_fin")
    a.e("v_rcp_f32 v113, v113")
    a.nop(1)
    for k in range(8):
        a.e(f"v_mul_f32 v{96+k}, v{96+k}, v113")
    for k in range(4):
        a.e(f"v_cvt_pk_bf16_f32 v{116+k}, v{96+2*k}, v{97+2*k}")
    a.e("v_and_b32 v114, 31, v0")
    a.e("v_lshlrev_b32 v114, 10, v114")
    a.e("v_bfe_u32 v115, v0, 5, 1")
    a.e("v_lshl_add_u32 v114, v115, 3, v114")
    a.e("s_lshl_b32 s36, s29, 18")
    a.e("s_lshl_b32 s37, s30, 15")
    a.e("s_add_u32 s36, s36, s37")
    a.e("s_lshl_b32 s37, s28, 5")
    a.e("s_add_u32 s36, s36, s37")
    a.e("buffer_store_dwordx2 v[116:117], v114, s[12:15], s36 offen")
    a.e("buffer_store_dwordx2 v[118:119], v114, s[12:15], s36 offen offset:16")
    stamp(a, 5)
    stamp_flush(a, 6, 4, name, slot)
    a.lab(f"L_{name}_end")
    a.e("s_endpgm")
    desc = kernel_desc(name, 128, 128)
    return a.L, desc, LDS, 256
```

```python
from gen import *
import gen

def gemm2(name, mode, xsrc=None, res=None, dst=None, slot=0):
    a = Asm()
    LN = mode in ("qkv", "ffn1")
    if LN:
        TM = TN = 128; KC = 64; K = 512
        WROW = 3072 if mode == "qkv" else 3584
        NCB = 12 if mode == "qkv" else 14
        NWG = 16 * NCB
        AROW = 1024
    else:
        TM = TN = 64; KC = 128
        K = 512 if mode == "wo" else 1792
        WROW = 1024
        NWG = 256
        AROW = K * 2
    RA = KC * 2; RB = TN * 2
    ASZ = TM * RA; BSZ = KC * RB
    SLOTB = ASZ + BSZ
    NST = K // KC
    NSLOT = min(4, NST)
    KS = KC // 32
    WM = TM // 2; MT = WM // 16; NT = TN // 32
    EXS = NSLOT * SLOTB
    EXC = EXS + 1024
    LDS = EXS + (2048 if LN else 0)
    kernel_head(a, name)
    a.e(f"s_cmp_ge_u32 s2, {NWG}")
    a.e(f"s_cbranch_scc1 L_{name}_end")
    stamp(a, 0)
    wkey = dict(qkv="wqkv", ffn1="w1", wo="wo", ffn2="w2")[mode]
    a.e(f"s_load_dwordx2 s[6:7], s[0:1], {KA[wkey]}")
    a.e(f"s_load_dwordx2 s[8:9], s[0:1], {KA['ws']}")
    if xsrc == "in" or res == "in":
        a.e(f"s_load_dwordx2 s[4:5], s[0:1], {KA['x']}")
    if mode in ("ffn1", "ffn2"):
        a.e(f"s_load_dwordx2 s[10:11], s[0:1], {KA['b1' if mode=='ffn1' else 'b2']}")
    if dst == "out":
        a.e(f"s_load_dwordx2 s[48:49], s[0:1], {KA['out']}")
    a.e("v_and_b32 v1, 63, v0")
    a.e("v_and_b32 v2, 15, v0")
    a.e("v_bfe_u32 v3, v0, 4, 2")
    a.e("v_lshrrev_b32 v28, 6, v0")
    a.nop(1)
    a.e("v_readfirstlane_b32 s30, v28")
    a.e("s_and_b32 s34, s2, 7")
    a.e("s_lshr_b32 s35, s2, 3")
    a.e("s_lshr_b32 s55, s30, 2")
    a.e("s_and_b32 s30, s30, 3")
    if LN:
        half = NCB // 2
        mg = 43 if half == 6 else 37
        a.e(f"s_mul_i32 s36, s35, {mg}")
        a.e("s_lshr_b32 s36, s36, 8")
        a.e(f"s_mul_i32 s37, s36, {half}")
        a.e("s_sub_u32 s37, s35, s37")
        a.e("s_lshr_b32 s38, s34, 1")
        a.e("s_lshl_b32 s38, s38, 2")
        a.e("s_add_u32 s38, s38, s36")
        a.e("s_and_b32 s39, s34, 1")
        a.e(f"s_mul_i32 s39, s39, {half}")
        a.e("s_add_u32 s39, s39, s37")
        a.e("s_lshl_b32 s28, s38, 7")
        a.e("s_lshl_b32 s29, s39, 7")
    else:
        a.e("s_lshr_b32 s36, s35, 3")
        a.e("s_lshl_b32 s34, s34, 2")
        a.e("s_add_u32 s34, s34, s36")
        a.e("s_and_b32 s35, s35, 7")
        a.e("s_lshl_b32 s28, s34, 6")
        a.e("s_lshl_b32 s29, s35, 6")
    a.e("s_lshr_b32 s31, s30, 1")
    a.e("s_and_b32 s32, s30, 1")
    a.e("s_waitcnt lgkmcnt(0)")
    if LN:
        if xsrc == "in":
            srd(a, 12, 4, 2 * MB)
        else:
            srd(a, 12, 8, 2 * MB, xsrc)
    else:
        srd(a, 12, 8, 2048 * AROW, WS_O if mode == "wo" else WS_H)
    srd(a, 16, 6, K * WROW)
    if mode == "qkv":
        srd(a, 20, 8, 6 * MB)
    elif mode == "ffn1":
        srd(a, 20, 8, 2048 * 3584, WS_H)
    elif dst == "out":
        srd(a, 20, 48, 2 * MB)
    else:
        srd(a, 20, 8, 2 * MB, dst)
    if not LN:
        if res == "in":
            srd(a, 24, 4, 2 * MB)
        else:
            srd(a, 24, 8, 2 * MB, res)
    if mode == "ffn1":
        srd(a, 44, 10, 1792 * 2)
    if mode == "ffn2":
        srd(a, 44, 10, 1024)
    VA, VB = 4, 8
    if RA == 128:
        NPA = 2
        a.e("v_lshrrev_b32 v28, 3, v1")
        a.e("v_and_b32 v29, 7, v1")
        a.e("v_lshrrev_b32 v30, 1, v28")
        a.e("v_xor_b32 v29, v29, v30")
        a.e(f"v_mul_u32_u24 v28, 0x{AROW:x}, v28")
        a.e(f"v_lshl_add_u32 v{VA}, v29, 4, v28")
        a.e("v_xor_b32 v29, 4, v29")
        a.e(f"v_lshl_add_u32 v{VA+1}, v29, 4, v28")
    else:
        NPA = 4
        a.e("v_xor_b32 v29, v2, v3")
        a.e(f"v_mul_u32_u24 v28, 0x{AROW:x}, v3")
        for p in range(4):
            a.e(f"v_xor_b32 v30, {4*p}, v29")
            a.e(f"v_lshl_add_u32 v{VA+p}, v30, 4, v28")
    if RB == 256:
        a.e("v_lshrrev_b32 v29, 1, v2")
        a.e("v_xor_b32 v29, v29, v3")
        a.e("v_and_b32 v30, 1, v2")
        a.e("v_lshl_add_u32 v29, v29, 1, v30")
        a.e(f"v_mul_u32_u24 v28, 0x{WROW:x}, v3")
        a.e(f"v_lshl_add_u32 v{VB}, v29, 4, v28")
        a.e("v_xor_b32 v29, 8, v29")
        a.e(f"v_lshl_add_u32 v{VB+1}, v29, 4, v28")
    else:
        a.e("v_lshrrev_b32 v28, 3, v1")
        a.e("v_bfe_u32 v29, v1, 4, 1")
        a.e("v_bfe_u32 v30, v1, 1, 2")
        a.e("v_xor_b32 v30, v30, v29")
        a.e("v_and_b32 v31, 1, v1")
        a.e("v_lshl_add_u32 v31, v30, 1, v31")
        a.e(f"v_mul_u32_u24 v28, 0x{WROW:x}, v28")
        a.e(f"v_lshl_add_u32 v{VB}, v31, 4, v28")
        a.e("v_xor_b32 v31, 4, v31")
        a.e(f"v_lshl_add_u32 v{VB+1}, v31, 4, v28")
    AR = TM // 4; BR = KC // 4
    a.e(f"s_mul_i32 s33, s30, {AR}")
    a.e("s_add_u32 s34, s28, s33")
    a.e(f"s_mul_i32 s50, s34, {AROW}")
    a.e(f"s_mul_i32 s51, s33, {RA}")
    a.e(f"s_mul_i32 s33, s30, {BR}")
    a.e(f"s_mul_i32 s52, s33, {WROW}")
    a.e("s_lshl_b32 s34, s29, 1")
    a.e("s_add_u32 s52, s52, s34")
    a.e(f"s_mul_i32 s53, s33, {RB}")
    a.e(f"s_add_u32 s53, s53, {ASZ}")
    def dma_items(c):
        sl = c % NSLOT
        out = []
        for q in range(4):
            rows = 1024 // RA
            p = (q & 1) if RA == 128 else q
            out.append([f"s_add_u32 s34, s50, 0x{q*rows*AROW + c*RA:x}",
                        f"s_add_u32 m0, s51, 0x{sl*SLOTB + q*1024:x}",
                        "s_nop 0",
                        f"buffer_load_dwordx4 v{VA+p}, s[12:15], s34 offen lds"])
        for q in range(4):
            rows = 1024 // RB
            p = (q >> 1) if RB == 256 else (q & 1)
            out.append([f"s_add_u32 s34, s52, 0x{(c*KC + q*rows)*WROW:x}",
                        f"s_add_u32 m0, s53, 0x{sl*SLOTB + q*1024:x}",
                        "s_nop 0",
                        f"buffer_load_dwordx4 v{VB+p}, s[16:19], s34 offen lds"])
        return out
    a.e("s_cmp_eq_u32 s55, 0")
    a.e(f"s_cbranch_scc1 L_{name}_comp")
    for c in range(2):
        for it in dma_items(c):
            for l in it:
                a.e(l)
    lissued = 1
    for c in range(NST):
        a.e(f"s_waitcnt vmcnt({min(63,(lissued-c)*8)})")
        a.e("s_barrier")
        lim = NSLOT - 1 if c == 0 else c - 1 + NSLOT
        while lissued + 1 < NST and lissued + 1 <= lim:
            lissued += 1
            for it in dma_items(lissued):
                for l in it:
                    a.e(l)
    a.e("s_endpgm")
    a.lab(f"L_{name}_comp")
    RES, BIAS = 96, 112
    if not LN:
        a.e("s_lshl_b32 s34, s31, 5")
        a.e("s_add_u32 s34, s34, s28")
        a.e("v_add_u32 v12, s34, v2")
        a.e("v_lshlrev_b32 v12, 10, v12")
        a.e("v_lshl_add_u32 v12, v3, 3, v12")
        a.e("s_lshl_b32 s54, s29, 1")
        a.e("s_lshl_b32 s34, s32, 6")
        a.e("s_add_u32 s54, s54, s34")
        a.e("v_add_u32 v13, 0x4000, v12")
        for t in range(2):
            for j in range(2):
                a.e(f"buffer_load_dwordx2 {vr(RES+(t*2+j)*2,2)}, v{12+t}, s[24:27], s54 offen offset:{32*j}")
        if mode == "ffn2":
            a.e("v_lshlrev_b32 v28, 3, v3")
            for j in range(2):
                a.e(f"buffer_load_dwordx2 {vr(BIAS+2*j,2)}, v28, s[44:47], s54 offen offset:{32*j}")

    if mode == "ffn1":
        a.e("v_lshlrev_b32 v28, 3, v3")
        a.e("s_lshl_b32 s34, s29, 1")
        a.e("s_lshl_b32 s35, s32, 7")
        a.e("s_add_u32 s34, s34, s35")
        a.e("s_lshl_b32 s35, s31, 6")
        a.e("s_add_u32 s36, s34, s35")
        a.e("s_sub_u32 s37, s34, s35")
    VX, VW = 14, 22
    a.e(f"s_mul_i32 s34, s31, {WM}")
    a.e("v_add_u32 v28, s34, v2")
    a.e(f"v_lshlrev_b32 v28, {7 if RA==128 else 8}, v28")
    if RA == 128:
        a.e("v_lshrrev_b32 v29, 1, v2")
        a.e("v_xor_b32 v29, v29, v3")
    else:
        a.e("v_xor_b32 v29, v2, v3")
    nx = 0
    XR = {}
    if LN:
        a.e(f"s_lshl_b32 s35, s32, {1 + 4 + 7}")
    for ks in range(KS):
        a.e(f"v_xor_b32 v30, {4*ks}, v29")
        a.e(f"v_lshl_add_u32 v30, v30, 4, v28")
        if LN:
            a.e(f"v_add_u32 v{VX+nx}, s35, v30"); XR[(ks, 0)] = VX + nx; nx += 1
            a.e(f"v_subrev_u32 v{VX+nx}, s35, v30"); XR[(ks, 1)] = VX + nx; nx += 1
        else:
            a.e(f"v_mov_b32 v{VX+nx}, v30"); XR[(ks, 0)] = VX + nx; XR[(ks, 1)] = VX + nx; nx += 1
    a.e("v_bfe_u32 v28, v0, 2, 2")
    a.e("v_lshl_add_u32 v29, v3, 3, v28")
    a.e(f"v_lshlrev_b32 v29, {8 if RB==256 else 7}, v29")
    a.e("v_and_b32 v30, 3, v0")
    a.e("v_lshl_add_u32 v29, v30, 3, v29")
    a.e(f"v_add_u32 v29, {ASZ}, v29")
    a.e("v_and_b32 v30, 1, v3")
    if RB == 256:
        a.e("v_lshl_add_u32 v28, v30, 2, v28")
    else:
        a.e("v_lshrrev_b32 v28, 1, v28")
        a.e("v_lshl_add_u32 v28, v30, 1, v28")
    for jj in range(NT):
        a.e(f"s_mul_i32 s34, s32, {NT}")
        if LN:
            a.e("s_lshl_b32 s35, s31, 1")
            a.e(f"s_xor_b32 s35, s35, {jj}")
            a.e("s_add_u32 s34, s34, s35")
        else:
            a.e(f"s_add_u32 s34, s34, {jj}")
        a.e("v_xor_b32 v30, s34, v28")
        a.e(f"v_lshl_add_u32 v{VW+jj}, v30, 5, v29")
    addr_regs = sorted(set(XR.values())) + [VW + jj for jj in range(NT)]
    if mode == "ffn1":
        for jj in range(4):
            a.e(f"buffer_load_dwordx2 {vr(BIAS+2*jj,2)}, v28, s[44:47], s{36 if jj<2 else 37} offen offset:{32*jj}") if False else None
    if LN:
        for k in range(4):
            a.e(f"v_mov_b32 v{120+k}, 0x3f803f80")
    XF, WF = 32, 64
    def xf(b, t): return XF + b * 16 + t * 4
    def wf(b, j): return WF + b * 16 + j * 4
    def acc(t, j):
        n = (t * NT + j) * 4
        return ar(n, 4)
    state = {"sub": 0}
    def frag_reads(s):
        c, ks, b = s // KS, s % KS, s & 1
        sl = c % NSLOT
        out = []
        want = (sl // 2) * 65536
        if want != state["sub"]:
            d = want - state["sub"]
            for r in addr_regs:
                out.append(f"v_add_u32 v{r}, 0x{d & 0xffffffff:x}, v{r}")
            state["sub"] = want
        base = sl * SLOTB - state["sub"]
        for t in range(MT):
            out.append(f"ds_read_b128 {vr(xf(b,t),4)}, v{XR[(ks, 1 if t >= 2 else 0)]} offset:{base + t*16*RA}")
        for j in range(NT):
            for aa in range(2):
                out.append(f"ds_read_b64_tr_b16 {vr(wf(b,j)+2*aa,2)}, v{VW+j} offset:{base + (32*ks+4*aa)*RB}")
        return out
    NSTEP = NST * KS
    stamp(a, 1)
    a.e("s_barrier")
    stamp(a, 2)
    for r in frag_reads(0):
        a.e(r)
    for s in range(NSTEP):
        c, ks, b = s // KS, s % KS, s & 1
        a.e("s_waitcnt lgkmcnt(0)")
        fill = []
        dm = []
        if s + 1 < NSTEP:
            if (s + 1) % KS == 0:
                a.e("s_barrier")
            fill = [[l] for l in frag_reads(s + 1)]
        fill += dm
        mf = []
        for j in range(NT):
            for t in range(MT):
                cc = "0" if s == 0 else acc(t, j)
                mf.append(f"v_mfma_f32_16x16x32_bf16 {acc(t,j)}, {vr(wf(b,j),4)}, {vr(xf(b,t),4)}, {cc}")
        if LN:
            for tt in range(2):
                d = ar(64 + 4 * tt, 4); cc = "0" if s == 0 else d
                mf.append(f"v_mfma_f32_16x16x32_bf16 {d}, v[120:123], {vr(xf(b,tt),4)}, {cc}")
                d = ar(72 + 4 * tt, 4); cc = "0" if s == 0 else d
                mf.append(f"v_mfma_f32_16x16x32_bf16 {d}, {vr(xf(b,tt),4)}, {vr(xf(b,tt),4)}, {cc}")
                d = ar(80 + 4 * tt, 4); cc = "0" if s == 0 else d
                mf.append(f"v_mfma_f32_16x16x32_bf16 {d}, {vr(wf(b,tt),4)}, v[120:123], {cc}")
        per = -(-len(fill) // (len(mf) * 3 // 4)) if fill else 0
        for m in mf:
            a.e(m)
            for _ in range(per):
                if fill:
                    for l in fill.pop(0):
                        a.e(l)
        while fill:
            for l in fill.pop(0):
                a.e(l)
    stamp(a, 3)
    a.nop(8)
    T = 32
    if not LN:
        a.e("s_waitcnt vmcnt(0)")
        for t in range(2):
            for j in range(2):
                R = RES + (t * 2 + j) * 2
                for k in range(4):
                    a.e(f"v_accvgpr_read_b32 v{T+8+k}, a{(t*NT+j)*4+k}")
                a.e(f"v_lshlrev_b32 v{T}, 16, v{R}")
                a.e(f"v_and_b32 v{T+1}, 0xffff0000, v{R}")
                a.e(f"v_lshlrev_b32 v{T+2}, 16, v{R+1}")
                a.e(f"v_and_b32 v{T+3}, 0xffff0000, v{R+1}")
                for k in range(4):
                    a.e(f"v_add_f32 v{T+8+k}, v{T+8+k}, v{T+k}")
                if mode == "ffn2":
                    a.e(f"v_lshlrev_b32 v{T}, 16, v{BIAS+2*j}")
                    a.e(f"v_and_b32 v{T+1}, 0xffff0000, v{BIAS+2*j}")
                    a.e(f"v_lshlrev_b32 v{T+2}, 16, v{BIAS+2*j+1}")
                    a.e(f"v_and_b32 v{T+3}, 0xffff0000, v{BIAS+2*j+1}")
                    for k in range(4):
                        a.e(f"v_add_f32 v{T+8+k}, v{T+8+k}, v{T+k}")
                o = T + 16 + (t * 2 + j) * 2
                a.e(f"v_cvt_pk_bf16_f32 v{o}, v{T+8}, v{T+9}")
                a.e(f"v_cvt_pk_bf16_f32 v{o+1}, v{T+10}, v{T+11}")
                a.e(f"buffer_store_dwordx2 {vr(o,2)}, v{12+t}, s[20:23], s54 offen offset:{32*j}")
    else:
        if mode == "ffn1":
            a.e("v_lshlrev_b32 v28, 3, v3")
            for jj in range(4):
                a.e(f"buffer_load_dwordx2 {vr(BIAS+2*jj,2)}, v28, s[44:47], s{36 if jj<2 else 37} offen offset:{32*jj}")
        a.e("v_and_b32 v28, 3, v2")
        a.e("v_lshrrev_b32 v29, 2, v2")
        for tt in range(2):
            a.e(f"v_accvgpr_read_b32 v{120+2*tt}, a{64+4*tt}")
            for k in range(4):
                a.e(f"v_accvgpr_read_b32 v{T+16+k}, a{72+4*tt+k}")
            a.e(f"v_mov_b32 v{121+2*tt}, v{T+16}")
            for k in range(1, 4):
                a.e(f"v_cmp_eq_u32 vcc, {k}, v28")
                a.nop(2)
                a.e(f"v_cndmask_b32 v{121+2*tt}, v{121+2*tt}, v{T+16+k}, vcc")
            a.e("v_cmp_eq_u32 vcc, v29, v3")
            a.e(f"v_mov_b32 v{T+20}, 0")
            a.nop(2)
            a.e(f"v_cndmask_b32 v{121+2*tt}, v{T+20}, v{121+2*tt}, vcc")
            xreduce_add(a, 121 + 2 * tt, 30, 31)
        a.e("s_lshl_b32 s34, s31, 6")
        a.e("s_lshl_b32 s35, s32, 5")
        a.e("s_add_u32 s34, s34, s35")
        a.e("v_add_u32 v28, s34, v2")
        a.e("v_lshlrev_b32 v28, 3, v28")
        a.e(f"v_add_u32 v28, 0x{EXS:x}, v28")
        for tt in range(2):
            a.e(f"v_mul_f32 v{T+2*tt}, {f32(1/512)}, v{120+2*tt}")
            a.e(f"v_mul_f32 v30, {f32(1/512)}, v{121+2*tt}")
            a.e(f"v_fma_f32 v30, -v{T+2*tt}, v{T+2*tt}, v30")
            a.e("v_max_f32 v30, 0, v30")
            a.e(f"v_add_f32 v30, {f32(1e-5)}, v30")
            a.e(f"v_rsq_f32 v{T+2*tt+1}, v30")
            a.nop(1)
            a.e(f"ds_write_b64 v28, {vr(T+2*tt,2)} offset:{tt*128}")
        a.e("s_lshl_b32 s34, s32, 8")
        a.e("s_lshl_b32 s35, s31, 7")
        a.e("s_add_u32 s34, s34, s35")
        a.e("v_lshlrev_b32 v29, 4, v3")
        a.e("v_add_u32 v29, s34, v29")
        a.e(f"v_add_u32 v29, 0x{EXC:x}, v29")
        for jj in range(2):
            for k in range(4):
                a.e(f"v_accvgpr_read_b32 v{T+8+4*jj+k}, a{80+4*jj+k}")
            a.nop(1)
            a.e(f"ds_write_b128 v29, {vr(T+8+4*jj,4)} offset:{jj*64}")
        a.e("s_waitcnt lgkmcnt(0)")
        a.e("s_barrier")
        stamp(a, 4)
        a.e("s_lshl_b32 s34, s31, 6")
        a.e("v_add_u32 v28, s34, v2")
        a.e("v_lshlrev_b32 v28, 3, v28")
        a.e(f"v_add_u32 v28, 0x{EXS:x}, v28")
        a.e("s_lshl_b32 s35, s32, 8")
        a.e("v_add_u32 v30, s35, v28")
        a.e("v_subrev_u32 v31, s35, v28")
        ST = 96
        for tt in range(4):
            a.e(f"ds_read_b64 {vr(ST+2*tt,2)}, v{30 if tt<2 else 31} offset:{tt*128}")
        a.e("s_lshl_b32 s34, s32, 8")
        a.e("v_lshlrev_b32 v28, 4, v3")
        a.e("v_add_u32 v28, s34, v28")
        a.e(f"v_add_u32 v28, 0x{EXC:x}, v28")
        a.e("s_lshl_b32 s35, s31, 7")
        a.e("v_add_u32 v30, s35, v28")
        a.e("v_subrev_u32 v31, s35, v28")
        CS = 64
        for jj in range(4):
            a.e(f"ds_read_b128 {vr(CS+4*jj,4)}, v{30 if jj<2 else 31} offset:{jj*64}")
        OV = 104
        a.e("s_lshl_b32 s34, s31, 6")
        a.e("s_add_u32 s34, s34, s28")
        a.e("s_lshl_b32 s35, s32, 5")
        for tt in range(4):
            a.e(f"s_{'add' if tt<2 else 'sub'}_u32 s38, s34, s35")
            a.e(f"s_add_u32 s38, s38, {16*tt}")
            a.e("v_add_u32 v28, s38, v2")
            if mode == "qkv":
                a.e("v_lshlrev_b32 v28, 5, v28")
            else:
                a.e("v_mul_u32_u24 v28, 0xe00, v28")
            a.e(f"v_lshl_add_u32 v{OV+tt}, v3, 3, v28")
        a.e("s_waitcnt vmcnt(0) lgkmcnt(0)")
        if mode == "ffn1":
            c0 = -2 * math.log2(math.e) * 0.7978845608028654
            a.e(f"s_mov_b32 s40, {f32(c0*0.044715)}")
            a.e(f"v_mov_b32 v108, {f32(c0)}")
        for jj in range(4):
            a.e("s_lshl_b32 s34, s31, 1")
            a.e(f"s_xor_b32 s34, s34, {jj}")
            a.e("s_lshl_b32 s34, s34, 4")
            a.e("s_lshl_b32 s35, s32, 6")
            a.e("s_add_u32 s34, s34, s35")
            a.e("s_add_u32 s34, s34, s29")
            if mode == "qkv":
                a.e("s_lshr_b32 s35, s34, 9")
                a.e("s_bfe_u32 s36, s34, 0x50004")
                a.e("s_lshl_b32 s37, s35, 21")
                a.e("s_lshl_b32 s36, s36, 16")
                a.e("s_add_u32 s37, s37, s36")
                a.e("s_cmp_eq_u32 s35, 0")
                a.e(f"s_cselect_b32 s39, {f32(QSCALE)}, 1.0")
            else:
                a.e("s_lshl_b32 s37, s34, 1")
                a.e(f"v_lshlrev_b32 v{T+8}, 16, v{BIAS+2*jj}")
                a.e(f"v_and_b32 v{T+9}, 0xffff0000, v{BIAS+2*jj}")
                a.e(f"v_lshlrev_b32 v{T+10}, 16, v{BIAS+2*jj+1}")
                a.e(f"v_and_b32 v{T+11}, 0xffff0000, v{BIAS+2*jj+1}")
            for tt in range(4):
                mean, rs = ST + 2 * tt, ST + 2 * tt + 1
                for k in range(4):
                    a.e(f"v_accvgpr_read_b32 v{T+k}, a{(tt*NT+jj)*4+k}")
                if mode == "qkv":
                    a.e(f"v_mul_f32 v{T+4}, s39, v{rs}")
                for k in range(4):
                    a.e(f"v_fma_f32 v{T+k}, -v{mean}, v{CS+4*jj+k}, v{T+k}")
                for k in range(4):
                    if mode == "qkv":
                        a.e(f"v_mul_f32 v{T+k}, v{T+4}, v{T+k}")
                    else:
                        a.e(f"v_fma_f32 v{T+k}, v{T+k}, v{rs}, v{T+8+k}")
                if mode == "ffn1":
                    for k in range(4):
                        a.e(f"v_mul_f32 v{T+4+k}, v{T+k}, v{T+k}")
                    for k in range(4):
                        a.e(f"v_fma_f32 v{T+4+k}, v{T+4+k}, s40, v108")
                    for k in range(4):
                        a.e(f"v_mul_f32 v{T+4+k}, v{T+4+k}, v{T+k}")
                    for k in range(4):
                        a.e(f"v_exp_f32 v{T+4+k}, v{T+4+k}")
                    for k in range(4):
                        a.e(f"v_add_f32 v{T+4+k}, 1.0, v{T+4+k}")
                    for k in range(4):
                        a.e(f"v_rcp_f32 v{T+4+k}, v{T+4+k}")
                    for k in range(4):
                        a.e(f"v_mul_f32 v{T+k}, v{T+k}, v{T+4+k}")
                o = T + 12 + 2 * (tt & 1)
                a.e(f"v_cvt_pk_bf16_f32 v{o}, v{T}, v{T+1}")
                a.e(f"v_cvt_pk_bf16_f32 v{o+1}, v{T+2}, v{T+3}")
                a.e(f"buffer_store_dwordx2 {vr(o,2)}, v{OV+tt}, s[20:23], s37 offen")
    stamp(a, 5)
    stamp_flush(a, 6, 8, name, slot)
    a.lab(f"L_{name}_end")
    a.e("s_endpgm")
    nacc = 88 if LN else MT * NT * 4
    desc = kernel_desc(name, 128 + nacc, 128)
    return a.L, desc, LDS, NWG
```

```python
import sys, math

NAME = "interleave_layers__softmax_full_mha__dense_activation_gelu__prompt"
MB = 1 << 20
WS_Q, WS_K, WS_V = 0, 2 * MB, 4 * MB
WS_O = 6 * MB
WS_X1 = 8 * MB
WS_H = 10 * MB
WS_X2 = 18 * MB
KA = dict(x=0, wqkv=8, wo=16, w1=32, b1=40, w2=48, b2=56, out=64, dbg=72, ws=80)
QSCALE = 0.25 * math.log2(math.e)

import struct
def f32(x):
    return "0x%08x" % struct.unpack("<I", struct.pack("<f", x))[0]

class Asm:
    def __init__(self):
        self.L = []
    def e(self, s):
        self.L.append("    " + s)
    def lab(self, s):
        self.L.append(s + ":")
    def c(self, s):
        self.L.append("    ; " + s)
    def nop(self, n):
        while n > 0:
            k = min(n, 16)
            self.e(f"s_nop {k-1}")
            n -= k

def vr(b, n=1):
    return f"v{b}" if n == 1 else f"v[{b}:{b+n-1}]"
def ar(b, n=1):
    return f"a{b}" if n == 1 else f"a[{b}:{b+n-1}]"
def sr(b, n=1):
    return f"s{b}" if n == 1 else f"s[{b}:{b+n-1}]"

def kernel_head(a, name):
    a.L.append(".p2align 8")
    a.L.append(f".globl {name}")
    a.L.append(f".type {name},@function")
    a.lab(name)

def kernel_desc(name, vgpr, accum, sgpr=102):
    return f""".p2align 6
.amdhsa_kernel {name}
  .amdhsa_next_free_vgpr {vgpr}
  .amdhsa_next_free_sgpr {sgpr}
  .amdhsa_accum_offset {accum}
  .amdhsa_group_segment_fixed_size 0
  .amdhsa_kernarg_size 88
  .amdhsa_user_sgpr_count 2
  .amdhsa_user_sgpr_kernarg_segment_ptr 1
  .amdhsa_system_sgpr_workgroup_id_x 1
.end_amdhsa_kernel
"""

def srd(a, d, base, size, off=0):
    if off:
        a.e(f"s_add_u32 s{d}, s{base}, 0x{off:x}")
        a.e(f"s_addc_u32 s{d+1}, s{base+1}, 0")
        a.e(f"s_and_b32 s{d+1}, s{d+1}, 0xffff")
    else:
        a.e(f"s_mov_b32 s{d}, s{base}")
        a.e(f"s_and_b32 s{d+1}, s{base+1}, 0xffff")
    a.e(f"s_mov_b32 s{d+2}, 0x{size:x}")
    a.e(f"s_mov_b32 s{d+3}, 0x20000")

STAMPS = False
WS_DBG = 32 * MB
def stamp(a, k):
    if STAMPS:
        a.e(f"s_memtime s[{64+2*k}:{65+2*k}]")
        if k == 0:
            a.e("s_memrealtime s[90:91]")
def stamp_flush(a, n, wsreg, name, slot):
    if not STAMPS:
        return
    a.e("s_memrealtime s[92:93]")
    a.e("s_waitcnt lgkmcnt(0)")
    a.e("s_cmp_lg_u32 s30, 0")
    a.e(f"s_cbranch_scc1 L_{name}_nost")
    srd(a, 96, wsreg, 64 * 65536, WS_DBG)
    a.e("s_lshl_b32 s100, s2, 6")
    a.e(f"s_add_u32 s100, s100, {slot*65536}")
    a.e("v_mov_b32 v1, 0")
    for k in range(n):
        a.e(f"v_mov_b32 v2, s{64+2*k}")
        a.e(f"buffer_store_dword v2, v1, s[96:99], s100 offen offset:{4*k}")
    a.e("v_mov_b32 v2, s90")
    a.e("buffer_store_dword v2, v1, s[96:99], s100 offen offset:56")
    a.e("v_mov_b32 v2, s92")
    a.e("buffer_store_dword v2, v1, s[96:99], s100 offen offset:60")
    a.lab(f"L_{name}_nost")

def xreduce_add(a, x, t0, t1):
    a.e(f"v_mov_b32 v{t0}, v{x}")
    a.e(f"v_mov_b32 v{t1}, v{x}")
    a.nop(2)
    a.e(f"v_permlane16_swap_b32 v{t0}, v{t1}")
    a.nop(2)
    a.e(f"v_add_f32 v{x}, v{t0}, v{t1}")
    a.nop(1)
    a.e(f"v_mov_b32 v{t0}, v{x}")
    a.e(f"v_mov_b32 v{t1}, v{x}")
    a.nop(2)
    a.e(f"v_permlane32_swap_b32 v{t0}, v{t1}")
    a.nop(2)
    a.e(f"v_add_f32 v{x}, v{t0}, v{t1}")

def gemm_ln(name, mode, xsrc, slot=0):
    a = Asm()
    NJ = 6 if mode == "qkv" else 7
    WROW = 3072 if mode == "qkv" else 3584
    WSIZE = 512 * WROW
    CH = NJ * 2
    PITCH = NJ * 32
    CHUNKB = 128 * PITCH
    BSZ = 4 * CHUNKB
    EX = BSZ
    LDS = BSZ + 4 * NJ * 1024
    if mode == "qkv":
        NPAT, PERROWS, DIVM = 3, 16, 43691
    else:
        NPAT, PERROWS, DIVM = 7, 32, 37450
    ND = 32 * CH // 64
    kernel_head(a, name)
    a.e("s_cmp_ge_u32 s2, 256")
    a.e(f"s_cbranch_scc1 L_{name}_end")
    stamp(a, 0)
    if xsrc == "in":
        a.e(f"s_load_dwordx2 s[4:5], s[0:1], {KA['x']}")
    a.e(f"s_load_dwordx2 s[6:7], s[0:1], {KA['wqkv'] if mode=='qkv' else KA['w1']}")
    a.e(f"s_load_dwordx2 s[8:9], s[0:1], {KA['ws']}")
    if mode == "ffn1":
        a.e(f"s_load_dwordx2 s[10:11], s[0:1], {KA['b1']}")
    a.e("v_and_b32 v1, 63, v0")
    a.e("v_and_b32 v2, 15, v0")
    a.e("v_bfe_u32 v3, v0, 4, 2")
    a.e("v_lshrrev_b32 v28, 6, v0")
    a.nop(1)
    a.e("v_readfirstlane_b32 s30, v28")
    a.e("s_and_b32 s34, s2, 7")
    a.e("s_lshr_b32 s35, s2, 3")
    a.e("s_lshr_b32 s36, s35, 4")
    a.e("s_lshl_b32 s34, s34, 1")
    a.e("s_add_u32 s34, s34, s36")
    a.e("s_and_b32 s35, s35, 15")
    a.e("s_lshl_b32 s28, s34, 7")
    a.e(f"s_mul_i32 s29, s35, {16*NJ}")
    a.e("s_lshl_b32 s36, s30, 5")
    a.e("s_add_u32 s31, s28, s36")
    a.e(f"s_mul_i32 s32, s36, {WROW}")
    a.e("s_lshl_b32 s37, s29, 1")
    a.e("s_add_u32 s32, s32, s37")
    a.e(f"s_mul_i32 s33, s36, {PITCH}")
    a.e("s_waitcnt lgkmcnt(0)")
    if xsrc == "in":
        srd(a, 12, 4, 2 * MB)
    else:
        srd(a, 12, 8, 2 * MB, xsrc)
    srd(a, 16, 6, WSIZE)
    if mode == "qkv":
        srd(a, 20, 8, 6 * MB)
    else:
        srd(a, 20, 8, 2048 * 3584, WS_H)
        srd(a, 24, 10, 1792 * 2)
    a.e("v_add_u32 v4, s31, v2")
    a.e("v_lshlrev_b32 v4, 10, v4")
    a.e("v_lshl_add_u32 v4, v3, 5, v4")
    a.e("v_add_u32 v5, 0x4000, v4")
    for p in range(NPAT):
        a.e(f"v_add_u32 v28, {64*p}, v1")
        a.e(f"v_mul_u32_u24 v29, 0x{DIVM:x}, v28")
        a.e("v_lshrrev_b32 v29, 19, v29")
        a.e(f"v_mul_u32_u24 v30, {CH}, v29")
        a.e("v_sub_u32 v30, v28, v30")
        a.e(f"v_mul_u32_u24 v29, 0x{WROW:x}, v29")
        a.e(f"v_lshl_add_u32 v{6+p}, v30, 4, v29")
    a.e("v_bfe_u32 v28, v0, 2, 2")
    a.e("v_lshl_add_u32 v28, v3, 4, v28")
    a.e(f"v_mul_u32_u24 v28, {PITCH}, v28")
    a.e("v_and_b32 v29, 3, v0")
    a.e("v_lshl_add_u32 v13, v29, 3, v28")
    a.e(f"v_add_u32 v23, 0x{2*CHUNKB:x}, v13")
    a.e("v_mov_b32 v22, 0x3f803f80")
    for k in range(4):
        a.e(f"v_mov_b32 v{24+k}, 0x3f803f80")
    for k in range(4):
        a.e(f"v_mov_b32 v{14+k}, 0")
    BIAS = 120
    BIAS = 40
    if mode == "ffn1":
        a.e("v_lshlrev_b32 v28, 3, v3")
        a.e("s_lshl_b32 s37, s29, 1")
        for j in range(NJ):
            a.e(f"buffer_load_dwordx2 {vr(BIAS+2*j,2)}, v28, s[24:27], s37 offen offset:{32*j}")
    def Areg(t, u, hf):
        return 128 + ((t * 8 + u) * 2 + hf) * 4
    for c in range(4):
        for u in (2 * c, 2 * c + 1):
            for t in range(2):
                for hf in range(2):
                    a.e(f"buffer_load_dwordx4 {vr(Areg(t,u,hf),4)}, v{4+t}, s[12:15], 0 offen offset:{u*128+hf*16}")
        for q in range(ND):
            per, p = divmod(q, NPAT)
            rowoff = 128 * c + per * PERROWS
            a.e(f"s_add_u32 s34, s32, 0x{rowoff*WROW:x}")
            a.e(f"s_add_u32 s35, s33, 0x{rowoff*PITCH + p*1024:x}")
            a.e("s_mov_b32 m0, s35")
            a.nop(1)
            a.e(f"buffer_load_dwordx4 v{6+p}, s[16:19], s34 offen lds")
    GR = 8 + ND
    def acc(t, j):
        return (t * NJ + j) * 4
    ONES = 8 * NJ
    def oacc(j):
        return ONES + j * 4
    def Bf(b, j):
        return 64 + b * 28 + j * 4
    def tr_reads(s):
        u, hf, b = s >> 1, s & 1, s & 1
        c = s >> 2
        base = 13 if c < 2 else 23
        sub = 0 if c < 2 else 2 * CHUNKB
        out = []
        for j in range(NJ):
            for aa in range(2):
                off = (64 * u + 8 * hf + 4 * aa) * PITCH + j * 32 - sub
                out.append(f"ds_read_b64_tr_b16 {vr(Bf(b,j)+2*aa,2)}, v{base} offset:{off}")
        return out
    stamp(a, 1)
    a.e(f"s_waitcnt vmcnt({3*GR})")
    a.e("s_barrier")
    stamp(a, 2)
    for r in tr_reads(0):
        a.e(r)
    def step(s, ones):
        u, hf, b = s >> 1, s & 1, s & 1
        c = s >> 2
        a.e("s_waitcnt lgkmcnt(0)")
        nxt = []
        if s + 1 < 16:
            if (s + 1) % 4 == 0:
                a.e(f"s_waitcnt vmcnt({(3-(c+1))*GR})")
                a.e("s_barrier")
                stamp(a, 3 + c)
            nxt = tr_reads(s + 1)
        st = []
        for t in range(2):
            for k in range(4):
                r = Areg(t, u, hf) + k
                st.append(f"v_dot2_f32_bf16 v{14+2*t}, v{r}, v22, v{14+2*t}")
                st.append(f"v_dot2_f32_bf16 v{15+2*t}, v{r}, v{r}, v{15+2*t}")
        first = (s == 0)
        ofirst = (s % 4 == 0)
        for j in range(NJ):
            for t in range(2):
                cc = "0" if first else ar(acc(t, j), 4)
                a.e(f"v_mfma_f32_16x16x32_bf16 {ar(acc(t,j),4)}, {vr(Bf(b,j),4)}, {vr(Areg(t,u,hf),4)}, {cc}")
                if nxt:
                    a.e(nxt.pop(0))
                for _ in range(2):
                    if st:
                        a.e(st.pop(0))
            if ones:
                cc = "0" if ofirst else ar(oacc(j), 4)
                a.e(f"v_mfma_f32_16x16x32_bf16 {ar(oacc(j),4)}, {vr(Bf(b,j),4)}, v[24:27], {cc}")
        while nxt:
            a.e(nxt.pop(0))
        while st:
            a.e(st.pop(0))
    for c in range(4):
        a.e(f"s_cmp_eq_u32 s30, {c}")
        a.e(f"s_cbranch_scc1 L_{name}_o{c}")
        for s in range(4 * c, 4 * c + 4):
            step(s, False)
        a.e(f"s_branch L_{name}_n{c}")
        a.lab(f"L_{name}_o{c}")
        for s in range(4 * c, 4 * c + 4):
            step(s, True)
        a.lab(f"L_{name}_n{c}")
    stamp(a, 6)
    a.nop(8)
    a.e("v_lshlrev_b32 v28, 4, v1")
    a.e(f"s_mul_i32 s34, s30, {NJ*1024}")
    a.e(f"s_add_u32 s34, s34, 0x{EX:x}")
    a.e("v_add_u32 v28, s34, v28")
    for j in range(NJ):
        for k in range(4):
            a.e(f"v_accvgpr_read_b32 v{64+j*4+k}, {ar(oacc(j)+k)}")
    a.nop(1)
    for j in range(NJ):
        a.e(f"ds_write_b128 v28, {vr(64+j*4,4)} offset:{j*1024}")
    for x in range(14, 18):
        xreduce_add(a, x, 30, 31)
    for t in range(2):
        a.e(f"v_mul_f32 v{18+2*t}, {f32(1/512)}, v{14+2*t}")
        a.e(f"v_mul_f32 v30, {f32(1/512)}, v{15+2*t}")
        a.e(f"v_fma_f32 v30, -v{18+2*t}, v{18+2*t}, v30")
        a.e("v_max_f32 v30, 0, v30")
        a.e(f"v_add_f32 v30, {f32(1e-5)}, v30")
        a.e(f"v_rsq_f32 v{19+2*t}, v30")
    a.e("s_waitcnt lgkmcnt(0)")
    a.e("s_barrier")
    stamp(a, 7)
    a.e("v_lshlrev_b32 v28, 4, v1")
    a.e(f"v_add_u32 v28, 0x{EX:x}, v28")
    for j in range(NJ):
        for w in range(4):
            dst = 64 + j * 4 if w == 0 else 128 + (j * 3 + (w - 1)) * 4
            a.e(f"ds_read_b128 {vr(dst,4)}, v28 offset:{(w*NJ+j)*1024}")
    a.e("s_waitcnt lgkmcnt(0)")
    for j in range(NJ):
        for w in range(1, 4):
            for k in range(4):
                a.e(f"v_add_f32 v{64+j*4+k}, v{64+j*4+k}, v{128+(j*3+(w-1))*4+k}")
    if mode == "qkv":
        a.e("v_lshlrev_b32 v28, 5, v2")
        a.e("v_lshl_add_u32 v28, v3, 3, v28")
        a.e("v_add_u32 v29, 512, v28")
        a.e("s_lshl_b32 s38, s31, 5")
    else:
        a.e("v_add_u32 v28, s31, v2")
        a.e("v_mul_u32_u24 v28, 0xe00, v28")
        a.e("v_lshl_add_u32 v28, v3, 3, v28")
        a.e(f"v_add_u32 v29, 0x{16*3584:x}, v28")
        a.e("s_lshl_b32 s38, s29, 1")
        a.e("s_waitcnt vmcnt(0)")
    T = 96
    for j in range(NJ):
        if mode == "qkv":
            a.e(f"s_add_u32 s34, s29, {16*j}")
            a.e("s_lshr_b32 s35, s34, 9")
            a.e("s_bfe_u32 s36, s34, 0x50004")
            a.e("s_lshl_b32 s37, s35, 21")
            a.e("s_lshl_b32 s36, s36, 16")
            a.e("s_add_u32 s37, s37, s36")
            a.e("s_add_u32 s37, s37, s38")
            a.e("s_cmp_eq_u32 s35, 0")
            a.e(f"s_cselect_b32 s39, {f32(QSCALE)}, 1.0")
        for t in range(2):
            for k in range(4):
                a.e(f"v_accvgpr_read_b32 v{T+k}, {ar(acc(t,j)+k)}")
            if mode == "qkv":
                a.e(f"v_mul_f32 v{T+4}, s39, v{19+2*t}")
            else:
                a.e(f"v_lshlrev_b32 v{T+8}, 16, v{BIAS+2*j}")
                a.e(f"v_and_b32 v{T+9}, 0xffff0000, v{BIAS+2*j}")
                a.e(f"v_lshlrev_b32 v{T+10}, 16, v{BIAS+2*j+1}")
                a.e(f"v_and_b32 v{T+11}, 0xffff0000, v{BIAS+2*j+1}")
            for k in range(4):
                a.e(f"v_fma_f32 v{T+k}, -v{18+2*t}, v{64+j*4+k}, v{T+k}")
            for k in range(4):
                if mode == "qkv":
                    a.e(f"v_mul_f32 v{T+k}, v{T+4}, v{T+k}")
                else:
                    a.e(f"v_fma_f32 v{T+k}, v{T+k}, v{19+2*t}, v{T+8+k}")
            if mode == "ffn1":
                c0 = -2 * math.log2(math.e) * 0.7978845608028654
                c1 = c0 * 0.044715
                a.e(f"v_mov_b32 v{T+16}, {f32(c0)}")
                for k in range(4):
                    a.e(f"v_mul_f32 v{T+4+k}, v{T+k}, v{T+k}")
                for k in range(4):
                    a.e(f"v_fmaak_f32 v{T+4+k}, v{T+4+k}, v{T+17}, v{T+16}" if False else
                        f"v_fma_f32 v{T+4+k}, v{T+4+k}, s40, v{T+16}")
                for k in range(4):
                    a.e(f"v_mul_f32 v{T+4+k}, v{T+4+k}, v{T+k}")
                for k in range(4):
                    a.e(f"v_exp_f32 v{T+4+k}, v{T+4+k}")
                for k in range(4):
                    a.e(f"v_add_f32 v{T+4+k}, 1.0, v{T+4+k}")
                for k in range(4):
                    a.e(f"v_rcp_f32 v{T+4+k}, v{T+4+k}")
                for k in range(4):
                    a.e(f"v_mul_f32 v{T+k}, v{T+k}, v{T+4+k}")
            a.e(f"v_cvt_pk_bf16_f32 v{T+12}, v{T}, v{T+1}")
            a.e(f"v_cvt_pk_bf16_f32 v{T+13}, v{T+2}, v{T+3}")
            if mode == "qkv":
                a.e(f"buffer_store_dwordx2 {vr(T+12,2)}, v{28+t}, s[20:23], s37 offen")
            else:
                a.e(f"buffer_store_dwordx2 {vr(T+12,2)}, v{28+t}, s[20:23], s38 offen offset:{32*j}")
            a.nop(2)
    stamp(a, 8)
    stamp_flush(a, 9, 8, name, slot)
    a.lab(f"L_{name}_end")
    a.e("s_endpgm")
    if mode == "ffn1":
        c1 = -2 * math.log2(math.e) * 0.7978845608028654 * 0.044715
        idx = a.L.index("    v_and_b32 v1, 63, v0")
        a.L.insert(idx, f"    s_mov_b32 s40, {f32(c1)}")
    desc = kernel_desc(name, 256 + 8 * NJ + 4 * NJ, 256)
    return a.L, desc, LDS

def gemm_res(name, mode, res, dst, slot=0):
    a = Asm()
    K = 512 if mode == "wo" else 1792
    AROW = K * 2
    AOFF = WS_O if mode == "wo" else WS_H
    NCH = K // 128
    NS = min(NCH, 9)
    LDS = NS * 16384
    kernel_head(a, name)
    a.e("s_cmp_ge_u32 s2, 256")
    a.e(f"s_cbranch_scc1 L_{name}_end")
    stamp(a, 0)
    if res == "in":
        a.e(f"s_load_dwordx2 s[4:5], s[0:1], {KA['x']}")
    a.e(f"s_load_dwordx2 s[6:7], s[0:1], {KA['wo'] if mode=='wo' else KA['w2']}")
    a.e(f"s_load_dwordx2 s[8:9], s[0:1], {KA['ws']}")
    if mode == "ffn2":
        a.e(f"s_load_dwordx2 s[10:11], s[0:1], {KA['b2']}")
    if dst == "out":
        a.e(f"s_load_dwordx2 s[40:41], s[0:1], {KA['out']}")
    a.e("v_and_b32 v1, 63, v0")
    a.e("v_and_b32 v2, 15, v0")
    a.e("v_bfe_u32 v3, v0, 4, 2")
    a.e("v_lshrrev_b32 v28, 6, v0")
    a.nop(1)
    a.e("v_readfirstlane_b32 s30, v28")
    a.e("s_and_b32 s34, s2, 7")
    a.e("s_lshr_b32 s35, s2, 3")
    a.e("s_lshr_b32 s36, s35, 3")
    a.e("s_lshl_b32 s34, s34, 2")
    a.e("s_add_u32 s34, s34, s36")
    a.e("s_and_b32 s35, s35, 7")
    a.e("s_lshl_b32 s28, s34, 6")
    a.e("s_lshl_b32 s29, s35, 6")
    a.e("s_lshl_b32 s36, s30, 4")
    a.e("s_add_u32 s31, s28, s36")
    a.e("s_lshl_b32 s36, s30, 5")
    a.e("s_lshl_b32 s32, s36, 10")
    a.e("s_lshl_b32 s37, s29, 1")
    a.e("s_add_u32 s32, s32, s37")
    a.e("s_lshl_b32 s33, s36, 7")
    a.e("s_waitcnt lgkmcnt(0)")
    srd(a, 12, 8, 2048 * AROW, AOFF)
    srd(a, 16, 6, K * 1024)
    if dst == "out":
        srd(a, 20, 40, 2 * MB)
    else:
        srd(a, 20, 8, 2 * MB, dst)
    if res == "in":
        srd(a, 24, 4, 2 * MB)
    else:
        srd(a, 24, 8, 2 * MB, res)
    if mode == "ffn2":
        srd(a, 44, 10, 1024)
    a.e("v_add_u32 v4, s31, v2")
    a.e(f"v_mul_u32_u24 v4, 0x{AROW:x}, v4")
    a.e("v_lshl_add_u32 v4, v3, 5, v4")
    a.e("v_add_u32 v5, s31, v2")
    a.e("v_lshlrev_b32 v5, 10, v5")
    a.e("v_lshl_add_u32 v5, v3, 3, v5")
    a.e("s_lshl_b32 s38, s29, 1")
    RES, BIAS = 40, 48
    for j in range(4):
        a.e(f"buffer_load_dwordx2 {vr(RES+2*j,2)}, v5, s[24:27], s38 offen offset:{32*j}")
    if mode == "ffn2":
        a.e("v_lshlrev_b32 v28, 3, v3")
        for j in range(4):
            a.e(f"buffer_load_dwordx2 {vr(BIAS+2*j,2)}, v28, s[44:47], s38 offen offset:{32*j}")
    a.e("v_lshrrev_b32 v28, 3, v1")
    a.e("v_bfe_u32 v29, v1, 4, 1")
    a.e("v_bfe_u32 v30, v1, 1, 2")
    a.e("v_xor_b32 v30, v30, v29")
    a.e("v_and_b32 v31, 1, v1")
    a.e("v_lshl_add_u32 v31, v30, 1, v31")
    a.e("v_lshlrev_b32 v28, 10, v28")
    a.e("v_lshl_add_u32 v6, v31, 4, v28")
    a.e("v_xor_b32 v31, 4, v31")
    a.e("v_lshl_add_u32 v7, v31, 4, v28")
    a.e("v_bfe_u32 v28, v0, 2, 2")
    a.e("v_lshl_add_u32 v29, v3, 4, v28")
    a.e("v_lshlrev_b32 v29, 7, v29")
    a.e("v_and_b32 v30, 3, v0")
    a.e("v_lshl_add_u32 v29, v30, 3, v29")
    a.e("v_lshrrev_b32 v28, 1, v28")
    a.e("v_and_b32 v30, 1, v3")
    a.e("v_lshl_add_u32 v28, v30, 1, v28")
    for j in range(4):
        a.e(f"v_xor_b32 v30, {j}, v28")
        a.e(f"v_lshl_add_u32 v{8+j}, v30, 5, v29")
    def Areg(u, hf):
        return (u * 2 + hf) * 4
    def issue_group(c):
        for u in (2 * c, 2 * c + 1):
            for hf in range(2):
                off = u * 128 + hf * 16
                if off < 4096:
                    a.e(f"buffer_load_dwordx4 {ar(Areg(u,hf),4)}, v4, s[12:15], 0 offen offset:{off}")
                else:
                    a.e(f"s_mov_b32 s39, {off}")
                    a.e(f"buffer_load_dwordx4 {ar(Areg(u,hf),4)}, v4, s[12:15], s39 offen")
        slot = c % NS
        for q in range(4):
            a.e(f"s_add_u32 s34, s32, 0x{(128*c+8*q)*1024:x}")
            a.e(f"s_add_u32 s35, s33, 0x{slot*16384 + 8*q*128:x}")
            a.e("s_mov_b32 m0, s35")
            a.nop(1)
            a.e(f"buffer_load_dwordx4 v{6+(q>>1)}, s[16:19], s34 offen lds")
    for c in range(NS):
        issue_group(c)
    ACC = 16
    def Bf(b, j):
        return 64 + b * 16 + j * 4
    state = {"sub": 0}
    def tr_reads(s):
        u, hf, b = s >> 1, s & 1, s & 1
        c = s >> 2
        slot = c % NS
        out = []
        base_off = slot * 16384
        want_sub = (base_off // 49152) * 49152
        if want_sub != state["sub"]:
            d = want_sub - state["sub"]
            for j in range(4):
                out.append(f"v_add_u32 v{8+j}, 0x{d & 0xffffffff:x}, v{8+j}")
            state["sub"] = want_sub
        for j in range(4):
            for aa in range(2):
                off = base_off + (64 * (u & 1) + 8 * hf + 4 * aa) * 128 - state["sub"]
                out.append(f"ds_read_b64_tr_b16 {vr(Bf(b,j)+2*aa,2)}, v{8+j} offset:{off}")
        return out
    NST = NCH * 4
    def outstanding_after(cwait, issued_upto):
        return min(63, (issued_upto - cwait) * 8)
    stamp(a, 1)
    a.e(f"s_waitcnt vmcnt({outstanding_after(0, NS-1)})")
    a.e("s_barrier")
    stamp(a, 2)
    for r in tr_reads(0):
        a.e(r)
    issued = NS - 1
    for s in range(NST):
        u, hf, b = s >> 1, s & 1, s & 1
        c = s >> 2
        a.e("s_waitcnt lgkmcnt(0)")
        nxt = []
        if s + 1 < NST:
            if (s + 1) % 4 == 0:
                a.e(f"s_waitcnt vmcnt({outstanding_after(c+1, issued)})")
                a.e("s_barrier")
                if issued + 1 < NCH:
                    issued += 1
                    issue_group(issued)
            nxt = tr_reads(s + 1)
        for j in range(4):
            cc = "0" if s == 0 else vr(ACC + 4 * j, 4)
            a.e(f"v_mfma_f32_16x16x32_bf16 {vr(ACC+4*j,4)}, {vr(Bf(b,j),4)}, {ar(Areg(u,hf),4)}, {cc}")
            for _ in range(3):
                if nxt:
                    a.e(nxt.pop(0))
        while nxt:
            a.e(nxt.pop(0))
    stamp(a, 3)
    a.nop(8)
    T = 96
    for j in range(4):
        a.e(f"v_lshlrev_b32 v{T}, 16, v{RES+2*j}")
        a.e(f"v_and_b32 v{T+1}, 0xffff0000, v{RES+2*j}")
        a.e(f"v_lshlrev_b32 v{T+2}, 16, v{RES+2*j+1}")
        a.e(f"v_and_b32 v{T+3}, 0xffff0000, v{RES+2*j+1}")
        for k in range(4):
            a.e(f"v_add_f32 v{ACC+4*j+k}, v{ACC+4*j+k}, v{T+k}")
        if mode == "ffn2":
            a.e(f"v_lshlrev_b32 v{T}, 16, v{BIAS+2*j}")
            a.e(f"v_and_b32 v{T+1}, 0xffff0000, v{BIAS+2*j}")
            a.e(f"v_lshlrev_b32 v{T+2}, 16, v{BIAS+2*j+1}")
            a.e(f"v_and_b32 v{T+3}, 0xffff0000, v{BIAS+2*j+1}")
            for k in range(4):
                a.e(f"v_add_f32 v{ACC+4*j+k}, v{ACC+4*j+k}, v{T+k}")
        a.e(f"v_cvt_pk_bf16_f32 v{T+4+2*j}, v{ACC+4*j}, v{ACC+4*j+1}")
        a.e(f"v_cvt_pk_bf16_f32 v{T+5+2*j}, v{ACC+4*j+2}, v{ACC+4*j+3}")
        a.e(f"buffer_store_dwordx2 {vr(T+4+2*j,2)}, v5, s[20:23], s38 offen offset:{32*j}")
    stamp(a, 4)
    stamp_flush(a, 5, 8, name, slot)
    a.lab(f"L_{name}_end")
    a.e("s_endpgm")
    nagpr = (K // 64) * 8
    desc = kernel_desc(name, 128 + nagpr, 128)
    return a.L, desc, LDS

def attn(name, slot=0):
    a = Asm()
    U = 4
    CONST = 131072
    NCROWS = (U + 1) * 32 + 8
    LDS = CONST + NCROWS * 32
    kernel_head(a, name)
    a.e("s_cmp_ge_u32 s2, 256")
    a.e(f"s_cbranch_scc1 L_{name}_end")
    stamp(a, 0)
    a.e(f"s_load_dwordx2 s[4:5], s[0:1], {KA['ws']}")
    a.e("v_and_b32 v1, 63, v0")
    a.e("v_lshrrev_b32 v114, 6, v0")
    a.nop(1)
    a.e("v_readfirstlane_b32 s30, v114")
    a.e("s_and_b32 s34, s2, 7")
    a.e("s_lshr_b32 s35, s2, 3")
    a.e("s_lshr_b32 s36, s35, 3")
    a.e("s_lshl_b32 s34, s34, 2")
    a.e("s_add_u32 s28, s34, s36")
    a.e("s_and_b32 s29, s35, 7")
    a.e("s_lshl_b32 s31, s28, 16")
    a.e("s_waitcnt lgkmcnt(0)")
    srd(a, 8, 4, 6 * MB)
    srd(a, 12, 4, 2 * MB, WS_O)
    a.e("v_lshlrev_b32 v114, 4, v1")
    a.e("s_lshl_b32 s32, s30, 13")
    for sec, (wsoff, ldsoff) in enumerate(((WS_K, 0), (WS_V, 65536))):
        for i in range(8):
            a.e(f"s_add_u32 s34, s31, s32")
            a.e(f"s_add_u32 s34, s34, 0x{wsoff + i*1024:x}")
            a.e(f"s_add_u32 s35, s32, 0x{ldsoff + i*1024:x}")
            a.e("s_mov_b32 m0, s35")
            a.nop(1)
            a.e("buffer_load_dwordx4 v114, s[8:11], s34 offen lds")
        if sec == 0:
            a.e("v_and_b32 v115, 31, v0")
            a.e("v_lshlrev_b32 v115, 5, v115")
            a.e("v_bfe_u32 v116, v0, 5, 1")
            a.e("v_lshl_add_u32 v2, v116, 4, v115")
            a.e("s_lshl_b32 s36, s29, 13")
            a.e("s_lshl_b32 s37, s30, 10")
            a.e("s_add_u32 s36, s36, s37")
            a.e("s_add_u32 s36, s36, s31")
            a.e("buffer_load_dwordx4 v[8:11], v2, s[8:11], s36 offen")
    a.e(f"v_cmp_gt_u32 vcc, {NCROWS}, v0")
    a.e("v_mov_b32 v116, 0x3f80")
    a.e("v_mov_b32 v117, 0")
    a.e("v_mov_b32 v118, 0")
    a.e("v_mov_b32 v119, 0")
    a.e("v_mov_b32 v120, 0")
    a.e("v_mov_b32 v121, 0")
    a.e("v_mov_b32 v122, 0")
    a.e("v_mov_b32 v123, 0")
    a.e("v_lshlrev_b32 v115, 5, v0")
    a.e(f"v_add_u32 v115, 0x{CONST:x}, v115")
    a.e("s_and_saveexec_b64 s[40:41], vcc")
    a.e(f"s_cbranch_execz L_{name}_nofill")
    a.e("ds_write_b128 v115, v[116:119]")
    a.e("ds_write_b128 v115, v[120:123] offset:16")
    a.lab(f"L_{name}_nofill")
    a.e("s_mov_b64 exec, s[40:41]")
    a.e("v_bfe_u32 v115, v0, 2, 2")
    a.e("v_and_b32 v116, 3, v0")
    a.e("v_lshlrev_b32 v115, 5, v115")
    a.e("v_lshl_add_u32 v115, v116, 3, v115")
    a.e("v_bfe_u32 v116, v0, 5, 1")
    a.e("v_lshlrev_b32 v117, 7, v116")
    a.e("v_add_u32 v118, 0x10000, v117")
    a.e(f"v_sub_u32 v119, 0x{CONST+128:x}, v117")
    a.e("v_bfe_u32 v116, v0, 4, 1")
    a.e("v_cmp_eq_u32 vcc, 1, v116")
    a.e(f"v_mov_b32 v120, {U*1024}")
    a.nop(2)
    a.e("v_cndmask_b32 v118, v118, v119, vcc")
    a.e("v_cndmask_b32 v4, v120, 0, vcc") if False else None
    a.e("v_mov_b32 v121, 0")
    a.e("v_cndmask_b32 v4, v120, v121, vcc")
    a.e("v_add_u32 v3, v118, v115")
    for k in range(16):
        a.e(f"v_mov_b32 v{48+k}, 0xff7fffff")
    a.e("v_mov_b32 v112, 0xff7fffff")
    a.e("v_mov_b32 v113, 0xff7fffff")
    S = (32, 48)
    Kf = (72, 76)
    Vf = (80, 88)
    a.e("s_waitcnt vmcnt(8)")
    a.e("s_barrier")
    stamp(a, 1)
    a.e("s_waitcnt lgkmcnt(0)")
    a.e("v_mov_b32 v5, v2")
    a.e(f"ds_read_b128 {vr(Kf[0],4)}, v5")
    a.e(f"ds_read_b128 {vr(Kf[1],4)}, v5 offset:1024")
    a.e("s_mov_b32 s33, 16")
    def maxes(sb):
        for k in range(0, 16, 4):
            a.e(f"v_max3_f32 v112, v{sb+k}, v{sb+k+1}, v112")
            a.e(f"v_max3_f32 v113, v{sb+k+2}, v{sb+k+3}, v113")
    a.lab(f"L_{name}_p1")
    for tt in range(U):
        b = tt & 1
        a.e("s_waitcnt lgkmcnt(1)")
        a.e(f"v_mfma_f32_32x32x16_bf16 {vr(S[b],16)}, {vr(Kf[b],4)}, v[8:11], 0")
        a.e(f"ds_read_b128 {vr(Kf[b],4)}, v5 offset:{(tt+2)*1024}")
        a.nop(1)
        maxes(S[b ^ 1])
    a.e(f"v_add_u32 v5, {U*1024}, v5")
    a.e("s_sub_u32 s33, s33, 1")
    a.e("s_cmp_lg_u32 s33, 0")
    a.e(f"s_cbranch_scc1 L_{name}_p1")
    stamp(a, 2)
    a.nop(12)
    maxes(S[1])
    a.e("v_max_f32 v112, v112, v113")
    a.nop(1)
    a.e("v_mov_b32 v113, v112")
    a.nop(2)
    a.e("v_permlane32_swap_b32 v112, v113")
    a.nop(2)
    a.e("v_max_f32 v112, v112, v113")
    a.e("v_sub_f32 v112, 0, v112")
    for k in range(16):
        a.e(f"v_mov_b32 v{16+k}, v112")
    for k in range(16):
        a.e(f"v_mov_b32 v{96+k}, 0")
    a.e("s_waitcnt vmcnt(0) lgkmcnt(0)")
    a.e("s_barrier")
    stamp(a, 3)
    a.e("v_mov_b32 v5, v2")
    a.e(f"ds_read_b128 {vr(Kf[0],4)}, v5")
    a.e("s_waitcnt lgkmcnt(0)")
    a.e(f"v_mfma_f32_32x32x16_bf16 {vr(S[0],16)}, {vr(Kf[0],4)}, v[8:11], v[16:31]")
    a.e(f"ds_read_b128 {vr(Kf[1],4)}, v5 offset:1024")
    def vreads(buf, tile_imm):
        out = []
        for m in range(2):
            for aa in range(2):
                out.append(f"ds_read_b64_tr_b16 {vr(Vf[buf]+4*m+2*aa,2)}, v3 offset:{tile_imm*1024 + (16*m+8*aa)*32}")
        return out
    for r in vreads(0, 0):
        a.e(r)
    a.e("s_mov_b32 s33, 16")
    a.nop(4)
    a.lab(f"L_{name}_p2")
    for tt in range(U):
        b = tt & 1
        sb = S[b]
        a.e("s_waitcnt lgkmcnt(4)")
        a.e(f"v_mfma_f32_32x32x16_bf16 {vr(S[b^1],16)}, {vr(Kf[b^1],4)}, v[8:11], v[16:31]")
        a.e(f"ds_read_b128 {vr(Kf[b],4)}, v5 offset:{(tt+2)*1024}")
        vr_list = vreads(b ^ 1, tt + 1)
        for half in range(2):
            o = 8 * half
            a.e(f"v_exp_f32 v{sb+o}, v{sb+o}")
            a.e(f"v_exp_f32 v{sb+o+1}, v{sb+o+1}")
            a.e(f"v_exp_f32 v{sb+o+2}, v{sb+o+2}")
            a.e(f"v_exp_f32 v{sb+o+3}, v{sb+o+3}")
            a.e(f"v_cvt_pk_bf16_f32 v{64+4*half}, v{sb+o}, v{sb+o+1}")
            a.e(f"v_exp_f32 v{sb+o+4}, v{sb+o+4}")
            a.e(f"v_exp_f32 v{sb+o+5}, v{sb+o+5}")
            a.e(f"v_cvt_pk_bf16_f32 v{65+4*half}, v{sb+o+2}, v{sb+o+3}")
            a.e(f"v_exp_f32 v{sb+o+6}, v{sb+o+6}")
            a.e(f"v_exp_f32 v{sb+o+7}, v{sb+o+7}")
            a.e(f"v_cvt_pk_bf16_f32 v{66+4*half}, v{sb+o+4}, v{sb+o+5}")
            if half == 0:
                a.e(vr_list[0]); a.e(vr_list[1])
            a.e(f"v_cvt_pk_bf16_f32 v{67+4*half}, v{sb+o+6}, v{sb+o+7}") if half == 1 else None
            if half == 0:
                a.e(f"v_cvt_pk_bf16_f32 v{67}, v{sb+6}, v{sb+7}")
                a.e(vr_list[2]); a.e(vr_list[3])
                a.e("s_waitcnt lgkmcnt(5)")
            else:
                a.nop(2)
            a.e(f"v_mfma_f32_32x32x16_bf16 v[96:111], {vr(Vf[b]+4*half,4)}, {vr(64+4*half,4)}, v[96:111]")
    a.e(f"v_add_u32 v5, {U*1024}, v5")
    a.e("v_add_u32 v3, v4, v3")
    a.e("s_sub_u32 s33, s33, 1")
    a.e("s_cmp_lg_u32 s33, 0")
    a.e(f"s_cbranch_scc1 L_{name}_p2")
    stamp(a, 4)
    a.nop(16)
    a.e("v_mov_b32 v112, v104")
    a.e("v_mov_b32 v113, v104")
    a.nop(2)
    a.e("v_permlane32_swap_b32 v112, v113")
    a.nop(2)
    a.e("v_rcp_f32 v112, v112")
    a.nop(1)
    for k in range(8):
        a.e(f"v_mul_f32 v{96+k}, v{96+k}, v112")
    for k in range(4):
        a.e(f"v_cvt_pk_bf16_f32 v{116+k}, v{96+2*k}, v{97+2*k}")
    a.e("v_and_b32 v114, 31, v0")
    a.e("v_lshlrev_b32 v114, 10, v114")
    a.e("v_bfe_u32 v115, v0, 5, 1")
    a.e("v_lshl_add_u32 v114, v115, 3, v114")
    a.e("s_lshl_b32 s36, s29, 18")
    a.e("s_lshl_b32 s37, s30, 15")
    a.e("s_add_u32 s36, s36, s37")
    a.e("s_lshl_b32 s37, s28, 5")
    a.e("s_add_u32 s36, s36, s37")
    a.e("buffer_store_dwordx2 v[116:117], v114, s[12:15], s36 offen")
    a.e("buffer_store_dwordx2 v[118:119], v114, s[12:15], s36 offen offset:16")
    stamp(a, 5)
    stamp_flush(a, 6, 4, name, slot)
    a.lab(f"L_{name}_end")
    a.e("s_endpgm")
    desc = kernel_desc(name, 128, 128)
    return a.L, desc, LDS

def main(outpath, nlaunch=None):
    ks = []
    ks.append(("qkv0_kernel", 256) + gemm_ln("qkv0_kernel", "qkv", "in", 0))
    ks.append(("attn_kernel", 512) + attn("attn_kernel", 1))
    ks.append(("wo0_kernel", 256) + gemm_res("wo0_kernel", "wo", "in", WS_X1, 2))
    ks.append(("ffn1_kernel", 256) + gemm_ln("ffn1_kernel", "ffn1", WS_X1, 3))
    ks.append(("ffn2a_kernel", 256) + gemm_res("ffn2a_kernel", "ffn2", WS_X1, WS_X2, 4))
    ks.append(("qkv1_kernel", 256) + gemm_ln("qkv1_kernel", "qkv", WS_X2, 5))
    ks.append(("wo1_kernel", 256) + gemm_res("wo1_kernel", "wo", WS_X2, WS_X1, 6))
    ks.append(("ffn2b_kernel", 256) + gemm_res("ffn2b_kernel", "ffn2", WS_X1, "out", 7))
    d = {k[0]: k for k in ks}
    order = ["qkv0_kernel", "attn_kernel", "wo0_kernel", "ffn1_kernel", "ffn2a_kernel",
             "qkv1_kernel", "attn_kernel", "wo1_kernel", "ffn1_kernel", "ffn2b_kernel"]
    if nlaunch:
        order = order[:nlaunch]
    ref = open(f"cdna_kernels/{NAME}.s.ref").read().splitlines()
    head = [l for l in ref if l.startswith(";") and "@launch" not in l and "Override" not in l and "grid=ceil" not in l]
    out = list(head)
    for n in order:
        k = d[n]
        out.append(f"; @launch kernel={n} grid=(256,1,1) block=({k[1]},1,1) lds={k[4]}")
    out.append('.amdgcn_target "amdgcn-amd-amdhsa--gfx950"')
    out.append(".text")
    for k in ks:
        out += k[2]
    out.append('.section .rodata,"a"')
    for k in ks:
        out.append(k[3])
    open(outpath, "w").write("\n".join(out) + "\n")

if __name__ == "__main__":
    import os
    if os.environ.get("STAMPS"):
        STAMPS = True
    main(sys.argv[1] if len(sys.argv) > 1 else f"cdna_kernels/{NAME}.s",
         int(sys.argv[2]) if len(sys.argv) > 2 else None)
```

```python
import sys, os
import gen
from gen import *
from gemm2 import gemm2
from attn2 import attn2

def main(outpath, nlaunch=None):
    ks = []
    def add(name, block, r):
        ks.append((name, block) + tuple(r))
    add("qkv0_kernel", 512, gemm2("qkv0_kernel", "qkv", xsrc="in", slot=0))
    add("attn_kernel", 512, attn2("attn_kernel", 1))
    add("wo0_kernel", 512, gemm2("wo0_kernel", "wo", res="in", dst=WS_X1, slot=2))
    add("ffn1_kernel", 512, gemm2("ffn1_kernel", "ffn1", xsrc=WS_X1, slot=3))
    add("ffn2a_kernel", 512, gemm2("ffn2a_kernel", "ffn2", res=WS_X1, dst=WS_X2, slot=4))
    add("qkv1_kernel", 512, gemm2("qkv1_kernel", "qkv", xsrc=WS_X2, slot=5))
    add("wo1_kernel", 512, gemm2("wo1_kernel", "wo", res=WS_X2, dst=WS_X1, slot=6))
    add("ffn2b_kernel", 512, gemm2("ffn2b_kernel", "ffn2", res=WS_X1, dst="out", slot=7))
    d = {k[0]: k for k in ks}
    order = ["qkv0_kernel", "attn_kernel", "wo0_kernel", "ffn1_kernel", "ffn2a_kernel",
             "qkv1_kernel", "attn_kernel", "wo1_kernel", "ffn1_kernel", "ffn2b_kernel"]
    if nlaunch:
        order = order[:nlaunch]
    ref = open(f"cdna_kernels/{NAME}.s.ref").read().splitlines()
    head = [l for l in ref if l.startswith(";") and "@launch" not in l and "Override" not in l and "grid=ceil" not in l]
    out = list(head)
    for n in order:
        k = d[n]
        out.append(f"; @launch kernel={n} grid=({k[5]},1,1) block=({k[1]},1,1) lds={k[4]}")
    out.append('.amdgcn_target "amdgcn-amd-amdhsa--gfx950"')
    out.append(".text")
    for k in ks:
        out += k[2]
    out.append('.section .rodata,"a"')
    for k in ks:
        out.append(k[3])
    open(outpath, "w").write("\n".join(out) + "\n")

if __name__ == "__main__":
    if os.environ.get("STAMPS"):
        gen.STAMPS = True
    main(sys.argv[1] if len(sys.argv) > 1 else f"cdna_kernels/{NAME}.s",
         int(sys.argv[2]) if len(sys.argv) > 2 else None)
```

```python
from gen import *
import gen

def attn2(name, slot=0):
    a = Asm()
    U = 8
    CONST = 131072
    NCROWS = (U + 1) * 32 + 8
    KMX = CONST + NCROWS * 32
    LDS = KMX + 64
    kernel_head(a, name)
    a.e("s_cmp_ge_u32 s2, 256")
    a.e(f"s_cbranch_scc1 L_{name}_end")
    stamp(a, 0)
    a.e(f"s_load_dwordx2 s[4:5], s[0:1], {KA['ws']}")
    a.e("v_and_b32 v1, 63, v0")
    a.e("v_lshrrev_b32 v114, 6, v0")
    a.nop(1)
    a.e("v_readfirstlane_b32 s30, v114")
    a.e("s_and_b32 s34, s2, 7")
    a.e("s_lshr_b32 s35, s2, 3")
    a.e("s_lshr_b32 s36, s35, 3")
    a.e("s_lshl_b32 s34, s34, 2")
    a.e("s_add_u32 s28, s34, s36")
    a.e("s_and_b32 s29, s35, 7")
    a.e("s_lshl_b32 s31, s28, 16")
    a.e("v_lshlrev_b32 v114, 4, v1")
    a.e("s_lshl_b32 s32, s30, 13")
    a.e("s_waitcnt lgkmcnt(0)")
    srd(a, 8, 4, 6 * MB)
    srd(a, 12, 4, 2 * MB, WS_O)
    a.e("s_add_u32 s38, s31, s32")
    for i in range(8):
        a.e(f"s_add_u32 s34, s38, 0x{WS_K + i*1024:x}")
        a.e(f"s_add_u32 m0, s32, 0x{i*1024:x}")
        a.nop(1)
        a.e("buffer_load_dwordx4 v114, s[8:11], s34 offen lds")
    a.e("v_and_b32 v115, 31, v0")
    a.e("v_lshlrev_b32 v115, 5, v115")
    a.e("v_bfe_u32 v116, v0, 5, 1")
    a.e("v_lshl_add_u32 v2, v116, 4, v115")
    a.e("s_lshl_b32 s36, s29, 13")
    a.e("s_lshl_b32 s37, s30, 10")
    a.e("s_add_u32 s36, s36, s37")
    a.e("s_add_u32 s36, s36, s31")
    a.e("buffer_load_dwordx4 v[8:11], v2, s[8:11], s36 offen")
    a.e("s_lshl_b32 s37, s30, 11")
    a.e("s_add_u32 s38, s31, s37")
    for qd in range(4):
        for i in range(2):
            a.e(f"s_add_u32 s34, s38, 0x{WS_V + qd*16384 + i*1024:x}")
            a.e(f"s_add_u32 m0, s37, 0x{65536 + qd*16384 + i*1024:x}")
            a.nop(1)
            a.e("buffer_load_dwordx4 v114, s[8:11], s34 offen lds")
    a.e(f"v_cmp_gt_u32 vcc, {NCROWS}, v0")
    a.e("v_mov_b32 v116, 0x3f80")
    for k in range(117, 124):
        a.e(f"v_mov_b32 v{k}, 0")
    a.e("v_lshlrev_b32 v115, 5, v0")
    a.e(f"v_add_u32 v115, 0x{CONST:x}, v115")
    a.e("s_and_saveexec_b64 s[40:41], vcc")
    a.e(f"s_cbranch_execz L_{name}_nofill")
    a.e("ds_write_b128 v115, v[116:119]")
    a.e("ds_write_b128 v115, v[120:123] offset:16")
    a.lab(f"L_{name}_nofill")
    a.e("s_mov_b64 exec, s[40:41]")
    a.e("v_bfe_u32 v115, v0, 2, 2")
    a.e("v_and_b32 v116, 3, v0")
    a.e("v_lshlrev_b32 v115, 5, v115")
    a.e("v_lshl_add_u32 v115, v116, 3, v115")
    a.e("v_bfe_u32 v116, v0, 5, 1")
    a.e("v_lshlrev_b32 v117, 7, v116")
    a.e("v_add_u32 v118, 0x10000, v117")
    a.e(f"v_sub_u32 v119, 0x{CONST+128:x}, v117")
    a.e("v_bfe_u32 v116, v0, 4, 1")
    a.e("v_cmp_eq_u32 vcc, 1, v116")
    a.e(f"v_mov_b32 v120, {U*1024}")
    a.e("v_mov_b32 v121, 0")
    a.nop(1)
    a.e("v_cndmask_b32 v118, v118, v119, vcc")
    a.e("v_cndmask_b32 v4, v120, v121, vcc")
    a.e("v_add_u32 v6, v118, v115")
    S = (32, 48)
    Kf = (72, 76)
    Vf = (80, 88)
    a.e("s_mov_b32 s42, 0")
    a.e("s_waitcnt vmcnt(8)")
    stamp(a, 1)
    a.e("v_lshlrev_b32 v115, 5, v1")
    a.e("v_add_u32 v115, s32, v115")
    for i in range(4):
        a.e(f"ds_read_b128 {vr(32+8*i,4)}, v115 offset:{i*2048}")
        a.e(f"ds_read_b128 {vr(36+8*i,4)}, v115 offset:{i*2048+16}")
    a.e("v_mov_b32 v116, 0")
    for k in range(4):
        a.e(f"v_dot2_f32_bf16 v116, v{8+k}, v{8+k}, v116")
    for i in range(4):
        a.e(f"v_mov_b32 v{64+i}, 0")
    a.e("s_waitcnt lgkmcnt(0)")
    for k in range(8):
        for i in range(4):
            a.e(f"v_dot2_f32_bf16 v{64+i}, v{32+8*i+k}, v{32+8*i+k}, v{64+i}")
    a.nop(3)
    a.e("v_max_f32 v64, v64, v65")
    a.e("v_max_f32 v66, v66, v67")
    a.e("v_max_f32 v64, v64, v66")
    a.nop(1)
    a.e("v_mov_b32 v65, v64")
    a.e("v_mov_b32 v117, v116")
    a.nop(2)
    a.e("v_permlane32_swap_b32 v64, v65")
    a.e("v_permlane32_swap_b32 v116, v117")
    a.nop(2)
    a.e("v_max_f32 v64, v64, v65")
    a.e("v_add_f32 v116, v116, v117")
    a.nop(1)
    a.e("v_mov_b32 v65, v64")
    a.nop(2)
    a.e("v_permlane16_swap_b32 v64, v65")
    a.nop(2)
    a.e("v_max_f32 v64, v64, v65")
    a.nop(2)
    for sh in (1, 2, 4, 8):
        a.e(f"v_max_f32_dpp v64, v64, v64 row_ror:{sh} row_mask:0xf bank_mask:0xf")
        a.nop(2)
    a.e("s_lshl_b32 s34, s30, 2")
    a.e(f"s_add_u32 s34, s34, 0x{KMX:x}")
    a.e("v_mov_b32 v65, s34")
    a.e("ds_write_b32 v65, v64")
    a.e("s_waitcnt vmcnt(6) lgkmcnt(0)")
    a.e("s_barrier")
    a.e(f"v_mov_b32 v65, 0x{KMX:x}")
    a.e("ds_read_b128 v[32:35], v65")
    a.e("ds_read_b128 v[36:39], v65 offset:16")
    a.e("s_waitcnt lgkmcnt(0)")
    a.e("v_max3_f32 v32, v32, v33, v34")
    a.e("v_max3_f32 v36, v36, v37, v38")
    a.e("v_max3_f32 v32, v32, v35, v39")
    a.e("v_max_f32 v32, v32, v36")
    a.e("v_mul_f32 v116, v116, v32")
    a.e("v_sqrt_f32 v116, v116")
    a.nop(1)
    a.e(f"v_mul_f32 v112, {f32(-(1.0 + 2.0**-7))}, v116")
    stamp(a, 2)
    a.lab(f"L_{name}_main")
    for k in range(16):
        a.e(f"v_mov_b32 v{16+k}, v112")
    for k in range(16):
        a.e(f"v_mov_b32 v{96+k}, 0")
    a.e("v_mov_b32 v5, v2")
    a.e("v_mov_b32 v3, v6")
    a.e(f"ds_read_b128 {vr(Kf[0],4)}, v5")
    a.e("s_waitcnt lgkmcnt(0)")
    a.e(f"v_mfma_f32_32x32x16_bf16 {vr(S[0],16)}, {vr(Kf[0],4)}, v[8:11], v[16:31]")
    a.e(f"ds_read_b128 {vr(Kf[1],4)}, v5 offset:1024")
    def vreads(buf, tile_imm):
        out = []
        for m in range(2):
            for aa in range(2):
                out.append(f"ds_read_b64_tr_b16 {vr(Vf[buf]+4*m+2*aa,2)}, v3 offset:{tile_imm*1024 + (16*m+8*aa)*32}")
        return out
    for r in vreads(0, 0):
        a.e(r)
    a.e("s_mov_b32 s33, 0")
    a.nop(4)
    a.lab(f"L_{name}_p2")
    a.e("s_cmp_lg_u32 s42, 0")
    a.e(f"s_cbranch_scc1 L_{name}_nob")
    a.e("s_cmp_eq_u32 s33, 1")
    a.e(f"s_cbranch_scc1 L_{name}_w4")
    a.e("s_cmp_eq_u32 s33, 3")
    a.e(f"s_cbranch_scc1 L_{name}_w2")
    a.e("s_cmp_lg_u32 s33, 5")
    a.e(f"s_cbranch_scc1 L_{name}_bar")
    a.e("s_waitcnt vmcnt(0)")
    a.e(f"s_branch L_{name}_bar")
    a.lab(f"L_{name}_w4")
    a.e("s_waitcnt vmcnt(4)")
    a.e(f"s_branch L_{name}_bar")
    a.lab(f"L_{name}_w2")
    a.e("s_waitcnt vmcnt(2)")
    a.lab(f"L_{name}_bar")
    a.e("s_barrier")
    a.lab(f"L_{name}_nob")
    for tt in range(U):
        b = tt & 1
        sb = S[b]
        a.e("s_waitcnt lgkmcnt(4)")
        a.e(f"v_mfma_f32_32x32x16_bf16 {vr(S[b^1],16)}, {vr(Kf[b^1],4)}, v[8:11], v[16:31]")
        a.e(f"ds_read_b128 {vr(Kf[b],4)}, v5 offset:{(tt+2)*1024}")
        vl = vreads(b ^ 1, tt + 1)
        for half in range(2):
            o = 8 * half
            a.e(f"v_exp_f32 v{sb+o}, v{sb+o}")
            a.e(f"v_exp_f32 v{sb+o+1}, v{sb+o+1}")
            a.e(f"v_exp_f32 v{sb+o+2}, v{sb+o+2}")
            a.e(f"v_exp_f32 v{sb+o+3}, v{sb+o+3}")
            a.e(f"v_cvt_pk_bf16_f32 v{64+4*half}, v{sb+o}, v{sb+o+1}")
            a.e(f"v_exp_f32 v{sb+o+4}, v{sb+o+4}")
            a.e(f"v_exp_f32 v{sb+o+5}, v{sb+o+5}")
            a.e(f"v_cvt_pk_bf16_f32 v{65+4*half}, v{sb+o+2}, v{sb+o+3}")
            a.e(f"v_exp_f32 v{sb+o+6}, v{sb+o+6}")
            a.e(f"v_exp_f32 v{sb+o+7}, v{sb+o+7}")
            a.e(f"v_cvt_pk_bf16_f32 v{66+4*half}, v{sb+o+4}, v{sb+o+5}")
            if half == 0:
                a.e(vl[0]); a.e(vl[1])
                a.e(f"v_cvt_pk_bf16_f32 v67, v{sb+6}, v{sb+7}")
                a.e(vl[2]); a.e(vl[3])
                a.e("s_waitcnt lgkmcnt(5)")
            else:
                a.e(f"v_cvt_pk_bf16_f32 v71, v{sb+14}, v{sb+15}")
                a.nop(2)
            a.e(f"v_mfma_f32_32x32x16_bf16 v[96:111], {vr(Vf[b]+4*half,4)}, {vr(64+4*half,4)}, v[96:111]")
    a.e(f"v_add_u32 v5, {U*1024}, v5")
    a.e("v_add_u32 v3, v4, v3")
    a.e("s_add_u32 s33, s33, 1")
    a.e("s_cmp_lg_u32 s33, 8")
    a.e(f"s_cbranch_scc1 L_{name}_p2")
    stamp(a, 4)
    a.nop(16)
    a.e("v_mov_b32 v113, v104")
    a.e("v_mov_b32 v114, v104")
    a.nop(2)
    a.e("v_permlane32_swap_b32 v113, v114")
    a.nop(2)
    a.e("s_cmp_lg_u32 s42, 0")
    a.e(f"s_cbranch_scc1 L_{name}_fin")
    a.e(f"v_cmp_nge_f32 vcc, v113, v115") if False else None
    import os
    a.e(f"v_mov_b32 v115, {f32(1e30 if os.environ.get('FORCE_FB') else 2.0**-64)}")
    a.e("v_cmp_nge_f32 vcc, v113, v115")
    a.nop(5)
    a.e(f"s_cbranch_vccz L_{name}_fin")
    a.e("s_mov_b32 s42, 16")
    for k in range(16):
        a.e(f"v_mov_b32 v{48+k}, 0xff7fffff")
    a.e("v_mov_b32 v112, 0xff7fffff")
    a.e("v_mov_b32 v113, 0xff7fffff")
    a.e("s_waitcnt lgkmcnt(0)")
    a.e("v_mov_b32 v5, v2")
    a.e(f"ds_read_b128 {vr(Kf[0],4)}, v5")
    a.e(f"ds_read_b128 {vr(Kf[1],4)}, v5 offset:1024")
    a.e("s_mov_b32 s33, 8")
    def maxes(sb):
        for k in range(0, 16, 4):
            a.e(f"v_max3_f32 v112, v{sb+k}, v{sb+k+1}, v112")
            a.e(f"v_max3_f32 v113, v{sb+k+2}, v{sb+k+3}, v113")
    a.lab(f"L_{name}_p1")
    for tt in range(U):
        b = tt & 1
        a.e("s_waitcnt lgkmcnt(1)")
        a.e(f"v_mfma_f32_32x32x16_bf16 {vr(S[b],16)}, {vr(Kf[b],4)}, v[8:11], 0")
        a.e(f"ds_read_b128 {vr(Kf[b],4)}, v5 offset:{(tt+2)*1024}")
        a.nop(1)
        maxes(S[b ^ 1])
    a.e(f"v_add_u32 v5, {U*1024}, v5")
    a.e("s_sub_u32 s33, s33, 1")
    a.e("s_cmp_lg_u32 s33, 0")
    a.e(f"s_cbranch_scc1 L_{name}_p1")
    a.nop(12)
    maxes(S[1])
    a.e("v_max_f32 v112, v112, v113")
    a.nop(1)
    a.e("v_mov_b32 v113, v112")
    a.nop(2)
    a.e("v_permlane32_swap_b32 v112, v113")
    a.nop(2)
    a.e("v_max_f32 v112, v112, v113")
    a.e("v_sub_f32 v112, 0, v112")
    a.e("s_waitcnt lgkmcnt(0)")
    a.e(f"s_branch L_{name}_main")
    a.lab(f"L_{name}_fin")
    a.e("v_rcp_f32 v113, v113")
    a.nop(1)
    for k in range(8):
        a.e(f"v_mul_f32 v{96+k}, v{96+k}, v113")
    for k in range(4):
        a.e(f"v_cvt_pk_bf16_f32 v{116+k}, v{96+2*k}, v{97+2*k}")
    a.e("v_and_b32 v114, 31, v0")
    a.e("v_lshlrev_b32 v114, 10, v114")
    a.e("v_bfe_u32 v115, v0, 5, 1")
    a.e("v_lshl_add_u32 v114, v115, 3, v114")
    a.e("s_lshl_b32 s36, s29, 18")
    a.e("s_lshl_b32 s37, s30, 15")
    a.e("s_add_u32 s36, s36, s37")
    a.e("s_lshl_b32 s37, s28, 5")
    a.e("s_add_u32 s36, s36, s37")
    a.e("buffer_store_dwordx2 v[116:117], v114, s[12:15], s36 offen")
    a.e("buffer_store_dwordx2 v[118:119], v114, s[12:15], s36 offen offset:16")
    stamp(a, 5)
    stamp_flush(a, 6, 4, name, slot)
    a.lab(f"L_{name}_end")
    a.e("s_endpgm")
    import os
    ex = os.environ.get("ATTN_EXP")
    if ex:
        i0 = a.L.index(f"L_{name}_nob:"); i1 = a.L.index(f"    s_cbranch_scc1 L_{name}_p2")
        keep = []
        for k, l in enumerate(a.L):
            if i0 < k < i1:
                if ex == "nolds" and ("ds_read" in l): continue
                if ex == "nomfma" and ("v_mfma" in l): continue
                if ex == "nocvt" and ("v_cvt_pk" in l): continue
                if ex == "noexp" and ("v_exp" in l): continue
                if ex == "nopv" and ("v_mfma" in l and "v[96:111]" in l): continue
            if "s_cbranch_vccz" in l:
                l = l.replace("s_cbranch_vccz", "s_branch")
            keep.append(l)
        a.L = keep
    desc = kernel_desc(name, 128, 128)
    return a.L, desc, LDS, 256
```

```python
from gen import *
import gen

def gemm2(name, mode, xsrc=None, res=None, dst=None, slot=0):
    a = Asm()
    LN = mode in ("qkv", "ffn1")
    if LN:
        TM = TN = 128; KC = 64; K = 512
        WROW = 3072 if mode == "qkv" else 3584
        NCB = 12 if mode == "qkv" else 14
        NWG = 16 * NCB
        AROW = 1024
    else:
        TM = TN = 64; KC = 128
        K = 512 if mode == "wo" else 1792
        WROW = 1024
        NWG = 256
        AROW = K * 2
    RA = KC * 2; RB = TN * 2
    ASZ = TM * RA; BSZ = KC * RB
    SLOTB = ASZ + BSZ
    NST = K // KC
    NSLOT = min(4, NST)
    KS = KC // 32
    WM = TM // 2; MT = WM // 16; NT = TN // 32
    EXS = NSLOT * SLOTB
    EXC = EXS + 1024
    LDS = EXS + (2048 if LN else 0)
    kernel_head(a, name)
    a.e(f"s_cmp_ge_u32 s2, {NWG}")
    a.e(f"s_cbranch_scc1 L_{name}_end")
    stamp(a, 0)
    wkey = dict(qkv="wqkv", ffn1="w1", wo="wo", ffn2="w2")[mode]
    a.e(f"s_load_dwordx2 s[6:7], s[0:1], {KA[wkey]}")
    a.e(f"s_load_dwordx2 s[8:9], s[0:1], {KA['ws']}")
    if xsrc == "in" or res == "in":
        a.e(f"s_load_dwordx2 s[4:5], s[0:1], {KA['x']}")
    if mode in ("ffn1", "ffn2"):
        a.e(f"s_load_dwordx2 s[10:11], s[0:1], {KA['b1' if mode=='ffn1' else 'b2']}")
    if dst == "out":
        a.e(f"s_load_dwordx2 s[48:49], s[0:1], {KA['out']}")
    a.e("v_and_b32 v1, 63, v0")
    a.e("v_and_b32 v2, 15, v0")
    a.e("v_bfe_u32 v3, v0, 4, 2")
    a.e("v_lshrrev_b32 v28, 6, v0")
    a.nop(1)
    a.e("v_readfirstlane_b32 s30, v28")
    a.e("s_and_b32 s34, s2, 7")
    a.e("s_lshr_b32 s35, s2, 3")
    a.e("s_lshr_b32 s55, s30, 2")
    a.e("s_and_b32 s30, s30, 3")
    if LN:
        half = NCB // 2
        mg = 43 if half == 6 else 37
        a.e(f"s_mul_i32 s36, s35, {mg}")
        a.e("s_lshr_b32 s36, s36, 8")
        a.e(f"s_mul_i32 s37, s36, {half}")
        a.e("s_sub_u32 s37, s35, s37")
        a.e("s_lshr_b32 s38, s34, 1")
        a.e("s_lshl_b32 s38, s38, 2")
        a.e("s_add_u32 s38, s38, s36")
        a.e("s_and_b32 s39, s34, 1")
        a.e(f"s_mul_i32 s39, s39, {half}")
        a.e("s_add_u32 s39, s39, s37")
        a.e("s_lshl_b32 s28, s38, 7")
        a.e("s_lshl_b32 s29, s39, 7")
    else:
        a.e("s_lshr_b32 s36, s35, 3")
        a.e("s_lshl_b32 s34, s34, 2")
        a.e("s_add_u32 s34, s34, s36")
        a.e("s_and_b32 s35, s35, 7")
        a.e("s_lshl_b32 s28, s34, 6")
        a.e("s_lshl_b32 s29, s35, 6")
    a.e("s_lshr_b32 s31, s30, 1")
    a.e("s_and_b32 s32, s30, 1")
    a.e("s_waitcnt lgkmcnt(0)")
    if LN:
        if xsrc == "in":
            srd(a, 12, 4, 2 * MB)
        else:
            srd(a, 12, 8, 2 * MB, xsrc)
    else:
        srd(a, 12, 8, 2048 * AROW, WS_O if mode == "wo" else WS_H)
    srd(a, 16, 6, K * WROW)
    if mode == "qkv":
        srd(a, 20, 8, 6 * MB)
    elif mode == "ffn1":
        srd(a, 20, 8, 2048 * 3584, WS_H)
    elif dst == "out":
        srd(a, 20, 48, 2 * MB)
    else:
        srd(a, 20, 8, 2 * MB, dst)
    if not LN:
        if res == "in":
            srd(a, 24, 4, 2 * MB)
        else:
            srd(a, 24, 8, 2 * MB, res)
    if mode == "ffn1":
        srd(a, 44, 10, 1792 * 2)
    if mode == "ffn2":
        srd(a, 44, 10, 1024)
    VA, VB = 4, 8
    if RA == 128:
        NPA = 2
        a.e("v_lshrrev_b32 v28, 3, v1")
        a.e("v_and_b32 v29, 7, v1")
        a.e("v_lshrrev_b32 v30, 1, v28")
        a.e("v_xor_b32 v29, v29, v30")
        a.e(f"v_mul_u32_u24 v28, 0x{AROW:x}, v28")
        a.e(f"v_lshl_add_u32 v{VA}, v29, 4, v28")
        a.e("v_xor_b32 v29, 4, v29")
        a.e(f"v_lshl_add_u32 v{VA+1}, v29, 4, v28")
    else:
        NPA = 4
        a.e("v_xor_b32 v29, v2, v3")
        a.e(f"v_mul_u32_u24 v28, 0x{AROW:x}, v3")
        for p in range(4):
            a.e(f"v_xor_b32 v30, {4*p}, v29")
            a.e(f"v_lshl_add_u32 v{VA+p}, v30, 4, v28")
    if RB == 256:
        a.e("v_lshrrev_b32 v29, 1, v2")
        a.e("v_xor_b32 v29, v29, v3")
        a.e("v_and_b32 v30, 1, v2")
        a.e("v_lshl_add_u32 v29, v29, 1, v30")
        a.e(f"v_mul_u32_u24 v28, 0x{WROW:x}, v3")
        a.e(f"v_lshl_add_u32 v{VB}, v29, 4, v28")
        a.e("v_xor_b32 v29, 8, v29")
        a.e(f"v_lshl_add_u32 v{VB+1}, v29, 4, v28")
    else:
        a.e("v_lshrrev_b32 v28, 3, v1")
        a.e("v_bfe_u32 v29, v1, 4, 1")
        a.e("v_bfe_u32 v30, v1, 1, 2")
        a.e("v_xor_b32 v30, v30, v29")
        a.e("v_and_b32 v31, 1, v1")
        a.e("v_lshl_add_u32 v31, v30, 1, v31")
        a.e(f"v_mul_u32_u24 v28, 0x{WROW:x}, v28")
        a.e(f"v_lshl_add_u32 v{VB}, v31, 4, v28")
        a.e("v_xor_b32 v31, 4, v31")
        a.e(f"v_lshl_add_u32 v{VB+1}, v31, 4, v28")
    AR = TM // 4; BR = KC // 4
    a.e(f"s_mul_i32 s33, s30, {AR}")
    a.e("s_add_u32 s34, s28, s33")
    a.e(f"s_mul_i32 s50, s34, {AROW}")
    a.e(f"s_mul_i32 s51, s33, {RA}")
    a.e(f"s_mul_i32 s33, s30, {BR}")
    a.e(f"s_mul_i32 s52, s33, {WROW}")
    a.e("s_lshl_b32 s34, s29, 1")
    a.e("s_add_u32 s52, s52, s34")
    a.e(f"s_mul_i32 s53, s33, {RB}")
    a.e(f"s_add_u32 s53, s53, {ASZ}")
    def dma_items(c):
        sl = c % NSLOT
        out = []
        for q in range(4):
            rows = 1024 // RA
            p = (q & 1) if RA == 128 else q
            out.append([f"s_add_u32 s34, s50, 0x{q*rows*AROW + c*RA:x}",
                        f"s_add_u32 m0, s51, 0x{sl*SLOTB + q*1024:x}",
                        "s_nop 0",
                        f"buffer_load_dwordx4 v{VA+p}, s[12:15], s34 offen lds"])
        for q in range(4):
            rows = 1024 // RB
            p = (q >> 1) if RB == 256 else (q & 1)
            out.append([f"s_add_u32 s34, s52, 0x{(c*KC + q*rows)*WROW:x}",
                        f"s_add_u32 m0, s53, 0x{sl*SLOTB + q*1024:x}",
                        "s_nop 0",
                        f"buffer_load_dwordx4 v{VB+p}, s[16:19], s34 offen lds"])
        return out
    a.e("s_cmp_eq_u32 s55, 0")
    a.e(f"s_cbranch_scc1 L_{name}_comp")
    for c in range(2):
        for it in dma_items(c):
            for l in it:
                a.e(l)
    lissued = 1
    for c in range(NST):
        a.e(f"s_waitcnt vmcnt({min(63,(lissued-c)*8)})")
        a.e("s_barrier")
        lim = NSLOT - 1 if c == 0 else c - 1 + NSLOT
        while lissued + 1 < NST and lissued + 1 <= lim:
            lissued += 1
            for it in dma_items(lissued):
                for l in it:
                    a.e(l)
    a.e("s_endpgm")
    a.lab(f"L_{name}_comp")
    RES, BIAS = 96, 112
    if not LN:
        a.e("s_lshl_b32 s34, s31, 5")
        a.e("s_add_u32 s34, s34, s28")
        a.e("v_add_u32 v12, s34, v2")
        a.e("v_lshlrev_b32 v12, 10, v12")
        a.e("v_lshl_add_u32 v12, v3, 3, v12")
        a.e("s_lshl_b32 s54, s29, 1")
        a.e("s_lshl_b32 s34, s32, 6")
        a.e("s_add_u32 s54, s54, s34")
        a.e("v_add_u32 v13, 0x4000, v12")
        for t in range(2):
            for j in range(2):
                a.e(f"buffer_load_dwordx2 {vr(RES+(t*2+j)*2,2)}, v{12+t}, s[24:27], s54 offen offset:{32*j}")
        if mode == "ffn2":
            a.e("v_lshlrev_b32 v28, 3, v3")
            for j in range(2):
                a.e(f"buffer_load_dwordx2 {vr(BIAS+2*j,2)}, v28, s[44:47], s54 offen offset:{32*j}")

    if mode == "ffn1":
        a.e("v_lshlrev_b32 v28, 3, v3")
        a.e("s_lshl_b32 s34, s29, 1")
        a.e("s_lshl_b32 s35, s32, 7")
        a.e("s_add_u32 s34, s34, s35")
        a.e("s_lshl_b32 s35, s31, 6")
        a.e("s_add_u32 s36, s34, s35")
        a.e("s_sub_u32 s37, s34, s35")
        for jj in range(4):
            a.e(f"buffer_load_dwordx2 {vr(BIAS+2*jj,2)}, v28, s[44:47], s{36 if jj<2 else 37} offen offset:{32*jj}")
    VX, VW = 14, 22
    a.e(f"s_mul_i32 s34, s31, {WM}")
    a.e("v_add_u32 v28, s34, v2")
    a.e(f"v_lshlrev_b32 v28, {7 if RA==128 else 8}, v28")
    if RA == 128:
        a.e("v_lshrrev_b32 v29, 1, v2")
        a.e("v_xor_b32 v29, v29, v3")
    else:
        a.e("v_xor_b32 v29, v2, v3")
    nx = 0
    XR = {}
    if LN:
        a.e(f"s_lshl_b32 s35, s32, {1 + 4 + 7}")
    for ks in range(KS):
        a.e(f"v_xor_b32 v30, {4*ks}, v29")
        a.e(f"v_lshl_add_u32 v30, v30, 4, v28")
        if LN:
            a.e(f"v_add_u32 v{VX+nx}, s35, v30"); XR[(ks, 0)] = VX + nx; nx += 1
            a.e(f"v_subrev_u32 v{VX+nx}, s35, v30"); XR[(ks, 1)] = VX + nx; nx += 1
        else:
            a.e(f"v_mov_b32 v{VX+nx}, v30"); XR[(ks, 0)] = VX + nx; XR[(ks, 1)] = VX + nx; nx += 1
    a.e("v_bfe_u32 v28, v0, 2, 2")
    a.e("v_lshl_add_u32 v29, v3, 3, v28")
    a.e(f"v_lshlrev_b32 v29, {8 if RB==256 else 7}, v29")
    a.e("v_and_b32 v30, 3, v0")
    a.e("v_lshl_add_u32 v29, v30, 3, v29")
    a.e(f"v_add_u32 v29, {ASZ}, v29")
    a.e("v_and_b32 v30, 1, v3")
    if RB == 256:
        a.e("v_lshl_add_u32 v28, v30, 2, v28")
    else:
        a.e("v_lshrrev_b32 v28, 1, v28")
        a.e("v_lshl_add_u32 v28, v30, 1, v28")
    for jj in range(NT):
        a.e(f"s_mul_i32 s34, s32, {NT}")
        if LN:
            a.e("s_lshl_b32 s35, s31, 1")
            a.e(f"s_xor_b32 s35, s35, {jj}")
            a.e("s_add_u32 s34, s34, s35")
        else:
            a.e(f"s_add_u32 s34, s34, {jj}")
        a.e("v_xor_b32 v30, s34, v28")
        a.e(f"v_lshl_add_u32 v{VW+jj}, v30, 5, v29")
    addr_regs = sorted(set(XR.values())) + [VW + jj for jj in range(NT)]
    if mode == "ffn1":
        for jj in range(4):
            a.e(f"buffer_load_dwordx2 {vr(BIAS+2*jj,2)}, v28, s[44:47], s{36 if jj<2 else 37} offen offset:{32*jj}") if False else None
    if LN:
        for k in range(4):
            a.e(f"v_mov_b32 v{120+k}, 0x3f803f80")
    XF, WF = 32, 64
    def xf(b, t): return XF + b * 16 + t * 4
    def wf(b, j): return WF + b * 16 + j * 4
    AC = 128
    def acc(t, j):
        n = (t * NT + j) * 4
        return vr(AC + n, 4)
    state = {"sub": 0}
    def frag_reads(s):
        c, ks, b = s // KS, s % KS, s & 1
        sl = c % NSLOT
        out = []
        want = (sl // 2) * 65536
        if want != state["sub"]:
            d = want - state["sub"]
            for r in addr_regs:
                out.append(f"v_add_u32 v{r}, 0x{d & 0xffffffff:x}, v{r}")
            state["sub"] = want
        base = sl * SLOTB - state["sub"]
        for t in range(MT):
            out.append(f"ds_read_b128 {vr(xf(b,t),4)}, v{XR[(ks, 1 if t >= 2 else 0)]} offset:{base + t*16*RA}")
        for j in range(NT):
            for aa in range(2):
                out.append(f"ds_read_b64_tr_b16 {vr(wf(b,j)+2*aa,2)}, v{VW+j} offset:{base + (32*ks+4*aa)*RB}")
        return out
    NSTEP = NST * KS
    stamp(a, 1)
    a.e("s_barrier")
    stamp(a, 2)
    for r in frag_reads(0):
        a.e(r)
    for s in range(NSTEP):
        c, ks, b = s // KS, s % KS, s & 1
        a.e("s_waitcnt lgkmcnt(0)")
        fill = []
        dm = []
        if s + 1 < NSTEP:
            if (s + 1) % KS == 0:
                a.e("s_barrier")
            fill = [[l] for l in frag_reads(s + 1)]
        fill += dm
        mf = []
        for j in range(NT):
            for t in range(MT):
                cc = "0" if s == 0 else acc(t, j)
                mf.append(f"v_mfma_f32_16x16x32_bf16 {acc(t,j)}, {vr(wf(b,j),4)}, {vr(xf(b,t),4)}, {cc}")
        if LN:
            for tt in range(2):
                d = vr(AC + 64 + 4 * tt, 4); cc = "0" if s == 0 else d
                mf.append(f"v_mfma_f32_16x16x32_bf16 {d}, v[120:123], {vr(xf(b,tt),4)}, {cc}")
                d = vr(AC + 72 + 4 * tt, 4); cc = "0" if s == 0 else d
                mf.append(f"v_mfma_f32_16x16x32_bf16 {d}, {vr(xf(b,tt),4)}, {vr(xf(b,tt),4)}, {cc}")
                d = vr(AC + 80 + 4 * tt, 4); cc = "0" if s == 0 else d
                mf.append(f"v_mfma_f32_16x16x32_bf16 {d}, {vr(wf(b,tt),4)}, v[120:123], {cc}")
        per = -(-len(fill) // (len(mf) * 3 // 4)) if fill else 0
        for m in mf:
            a.e(m)
            for _ in range(per):
                if fill:
                    for l in fill.pop(0):
                        a.e(l)
        while fill:
            for l in fill.pop(0):
                a.e(l)
    stamp(a, 3)
    a.nop(8)
    T = 32
    if not LN:
        a.e("s_waitcnt vmcnt(0)")
        for t in range(2):
            for j in range(2):
                R = RES + (t * 2 + j) * 2
                a.e(f"v_lshlrev_b32 v{T}, 16, v{R}")
                a.e(f"v_and_b32 v{T+1}, 0xffff0000, v{R}")
                a.e(f"v_lshlrev_b32 v{T+2}, 16, v{R+1}")
                a.e(f"v_and_b32 v{T+3}, 0xffff0000, v{R+1}")
                for k in range(4):
                    a.e(f"v_add_f32 v{T+8+k}, v{AC+(t*NT+j)*4+k}, v{T+k}")
                if mode == "ffn2":
                    a.e(f"v_lshlrev_b32 v{T}, 16, v{BIAS+2*j}")
                    a.e(f"v_and_b32 v{T+1}, 0xffff0000, v{BIAS+2*j}")
                    a.e(f"v_lshlrev_b32 v{T+2}, 16, v{BIAS+2*j+1}")
                    a.e(f"v_and_b32 v{T+3}, 0xffff0000, v{BIAS+2*j+1}")
                    for k in range(4):
                        a.e(f"v_add_f32 v{T+8+k}, v{T+8+k}, v{T+k}")
                o = T + 16 + (t * 2 + j) * 2
                a.e(f"v_cvt_pk_bf16_f32 v{o}, v{T+8}, v{T+9}")
                a.e(f"v_cvt_pk_bf16_f32 v{o+1}, v{T+10}, v{T+11}")
                a.e(f"buffer_store_dwordx2 {vr(o,2)}, v{12+t}, s[20:23], s54 offen offset:{32*j}")
    else:
        a.e("v_and_b32 v28, 3, v2")
        a.e("v_lshrrev_b32 v29, 2, v2")
        for tt in range(2):
            a.e(f"v_mov_b32 v{120+2*tt}, v{AC+64+4*tt}")
            a.e(f"v_mov_b32 v{121+2*tt}, v{AC+72+4*tt}")
            for k in range(1, 4):
                a.e(f"v_cmp_eq_u32 vcc, {k}, v28")
                a.nop(2)
                a.e(f"v_cndmask_b32 v{121+2*tt}, v{121+2*tt}, v{AC+72+4*tt+k}, vcc")
            a.e("v_cmp_eq_u32 vcc, v29, v3")
            a.e(f"v_mov_b32 v{T+20}, 0")
            a.nop(2)
            a.e(f"v_cndmask_b32 v{121+2*tt}, v{T+20}, v{121+2*tt}, vcc")
            xreduce_add(a, 121 + 2 * tt, 30, 31)
        a.e("s_lshl_b32 s34, s31, 6")
        a.e("s_lshl_b32 s35, s32, 5")
        a.e("s_add_u32 s34, s34, s35")
        a.e("v_add_u32 v28, s34, v2")
        a.e("v_lshlrev_b32 v28, 3, v28")
        a.e(f"v_add_u32 v28, 0x{EXS:x}, v28")
        for tt in range(2):
            a.e(f"v_mul_f32 v{T+2*tt}, {f32(1/512)}, v{120+2*tt}")
            a.e(f"v_mul_f32 v30, {f32(1/512)}, v{121+2*tt}")
            a.e(f"v_fma_f32 v30, -v{T+2*tt}, v{T+2*tt}, v30")
            a.e("v_max_f32 v30, 0, v30")
            a.e(f"v_add_f32 v30, {f32(1e-5)}, v30")
            a.e(f"v_rsq_f32 v{T+2*tt+1}, v30")
            a.nop(1)
            a.e(f"ds_write_b64 v28, {vr(T+2*tt,2)} offset:{tt*128}")
        a.e("s_lshl_b32 s34, s32, 8")
        a.e("s_lshl_b32 s35, s31, 7")
        a.e("s_add_u32 s34, s34, s35")
        a.e("v_lshlrev_b32 v29, 4, v3")
        a.e("v_add_u32 v29, s34, v29")
        a.e(f"v_add_u32 v29, 0x{EXC:x}, v29")
        for jj in range(2):
            a.e(f"ds_write_b128 v29, {vr(AC+80+4*jj,4)} offset:{jj*64}")
        a.e("s_waitcnt lgkmcnt(0)")
        a.e("s_barrier")
        stamp(a, 4)
        a.e("s_lshl_b32 s34, s31, 6")
        a.e("v_add_u32 v28, s34, v2")
        a.e("v_lshlrev_b32 v28, 3, v28")
        a.e(f"v_add_u32 v28, 0x{EXS:x}, v28")
        a.e("s_lshl_b32 s35, s32, 8")
        a.e("v_add_u32 v30, s35, v28")
        a.e("v_subrev_u32 v31, s35, v28")
        ST = 96
        for tt in range(4):
            a.e(f"ds_read_b64 {vr(ST+2*tt,2)}, v{30 if tt<2 else 31} offset:{tt*128}")
        a.e("s_lshl_b32 s34, s32, 8")
        a.e("v_lshlrev_b32 v28, 4, v3")
        a.e("v_add_u32 v28, s34, v28")
        a.e(f"v_add_u32 v28, 0x{EXC:x}, v28")
        a.e("s_lshl_b32 s35, s31, 7")
        a.e("v_add_u32 v30, s35, v28")
        a.e("v_subrev_u32 v31, s35, v28")
        CS = 64
        for jj in range(4):
            a.e(f"ds_read_b128 {vr(CS+4*jj,4)}, v{30 if jj<2 else 31} offset:{jj*64}")
        OV = 104
        a.e("s_lshl_b32 s34, s31, 6")
        a.e("s_add_u32 s34, s34, s28")
        a.e("s_lshl_b32 s35, s32, 5")
        for tt in range(4):
            a.e(f"s_{'add' if tt<2 else 'sub'}_u32 s38, s34, s35")
            a.e(f"s_add_u32 s38, s38, {16*tt}")
            a.e("v_add_u32 v28, s38, v2")
            if mode == "qkv":
                a.e("v_lshlrev_b32 v28, 5, v28")
            else:
                a.e("v_subrev_u32 v28, s34, v28")
                a.e("v_mul_u32_u24 v28, 144, v28")
            a.e(f"v_lshl_add_u32 v{OV+tt}, v3, 3, v28")
        a.e("s_waitcnt vmcnt(0) lgkmcnt(0)")
        if mode == "ffn1":
            c0 = -2 * math.log2(math.e) * 0.7978845608028654
            a.e(f"s_mov_b32 s40, {f32(c0*0.044715)}")
            a.e(f"s_mov_b32 s41, {f32(c0*0.044715)}")
            a.e(f"v_mov_b32 v108, {f32(c0)}")
            a.e(f"v_mov_b32 v109, {f32(c0)}")
            a.e("v_mov_b32 v110, 1.0")
            a.e("v_mov_b32 v111, 1.0")
        for jj in range(4):
            a.e("s_lshl_b32 s34, s31, 1")
            a.e(f"s_xor_b32 s34, s34, {jj}")
            a.e("s_lshl_b32 s34, s34, 4")
            a.e("s_lshl_b32 s35, s32, 6")
            a.e("s_add_u32 s34, s34, s35")
            a.e("s_add_u32 s34, s34, s29")
            if mode == "qkv":
                a.e("s_lshr_b32 s35, s34, 9")
                a.e("s_bfe_u32 s36, s34, 0x50004")
                a.e("s_lshl_b32 s37, s35, 21")
                a.e("s_lshl_b32 s36, s36, 16")
                a.e("s_add_u32 s37, s37, s36")
                a.e("s_cmp_eq_u32 s35, 0")
                a.e(f"s_cselect_b32 s39, {f32(QSCALE)}, 1.0")
            else:
                a.e(f"s_mul_i32 s57, s30, {64*144}")
                a.e("s_lshl_b32 s56, s31, 1")
                a.e(f"s_xor_b32 s56, s56, {jj}")
                a.e("s_lshl_b32 s56, s56, 5")
                a.e("s_add_u32 s56, s56, s57")
                BU = T + 16
                a.e(f"v_lshlrev_b32 v{BU}, 16, v{BIAS+2*jj}")
                a.e(f"v_and_b32 v{BU+1}, 0xffff0000, v{BIAS+2*jj}")
                a.e(f"v_lshlrev_b32 v{BU+2}, 16, v{BIAS+2*jj+1}")
                a.e(f"v_and_b32 v{BU+3}, 0xffff0000, v{BIAS+2*jj+1}")
            def A0(tt): return AC + (tt * NT + jj) * 4
            def st(tt): return vr(ST + 2 * tt, 2)
            TP = [(tt, p) for tt in range(4) for p in range(2)]
            if mode == "qkv":
                for tt in range(4):
                    a.e(f"v_mul_f32 v{T+2*tt}, s39, v{ST+2*tt+1}")
            for tt, p in TP:
                a.e(f"v_pk_fma_f32 {vr(A0(tt)+2*p,2)}, {vr(CS+4*jj+2*p,2)}, {st(tt)}, {vr(A0(tt)+2*p,2)} op_sel_hi:[1,0,1] neg_lo:[0,1,0] neg_hi:[0,1,0]")
            if mode == "qkv":
                for tt, p in TP:
                    a.e(f"v_pk_mul_f32 {vr(A0(tt)+2*p,2)}, {vr(A0(tt)+2*p,2)}, {vr(T+2*tt,2)} op_sel_hi:[1,0]")
            else:
                def tm(tt, p): return T + 4 * tt + 2 * p
                for tt, p in TP:
                    a.e(f"v_pk_fma_f32 {vr(A0(tt)+2*p,2)}, {vr(A0(tt)+2*p,2)}, {st(tt)}, {vr(BU+2*p,2)} op_sel:[0,1,0] op_sel_hi:[1,1,1]")
                for tt, p in TP:
                    a.e(f"v_pk_mul_f32 {vr(tm(tt,p),2)}, {vr(A0(tt)+2*p,2)}, {vr(A0(tt)+2*p,2)}")
                for tt, p in TP:
                    a.e(f"v_pk_fma_f32 {vr(tm(tt,p),2)}, {vr(tm(tt,p),2)}, s[40:41], v[108:109]")
                for tt, p in TP:
                    a.e(f"v_pk_mul_f32 {vr(tm(tt,p),2)}, {vr(tm(tt,p),2)}, {vr(A0(tt)+2*p,2)}")
                for k in range(16):
                    a.e(f"v_exp_f32 v{T+k}, v{T+k}")
                for tt, p in TP:
                    a.e(f"v_pk_add_f32 {vr(tm(tt,p),2)}, {vr(tm(tt,p),2)}, v[110:111]")
                for k in range(16):
                    a.e(f"v_rcp_f32 v{T+k}, v{T+k}")
                for tt, p in TP:
                    a.e(f"v_pk_mul_f32 {vr(A0(tt)+2*p,2)}, {vr(A0(tt)+2*p,2)}, {vr(tm(tt,p),2)}")
            for tt in range(4):
                o = T + 20 + 2 * tt
                a.e(f"v_cvt_pk_bf16_f32 v{o}, v{A0(tt)}, v{A0(tt)+1}")
                a.e(f"v_cvt_pk_bf16_f32 v{o+1}, v{A0(tt)+2}, v{A0(tt)+3}")
                if mode != "qkv":
                    a.e(f"v_add_u32 v{T+28+tt}, s56, v{OV+tt}")
            for tt in range(4):
                o = T + 20 + 2 * tt
                if mode == "qkv":
                    a.e(f"buffer_store_dwordx2 {vr(o,2)}, v{OV+tt}, s[20:23], s37 offen sc1")
                else:
                    a.e(f"ds_write_b64 v{T+28+tt}, {vr(o,2)}")
        if mode == "ffn1":
            a.e("v_lshrrev_b32 v28, 3, v1")
            a.e("v_and_b32 v29, 7, v1")
            a.e("v_mul_u32_u24 v30, 144, v28")
            a.e("v_lshl_add_u32 v30, v29, 4, v30")
            a.e("v_add_u32 v30, s57, v30")
            a.e("s_lshl_b32 s34, s31, 6")
            a.e("s_add_u32 s34, s34, s28")
            a.e("v_add_u32 v28, s34, v28")
            a.e("v_mul_u32_u24 v28, 0xe00, v28")
            a.e("v_lshl_add_u32 v28, v29, 4, v28")
            a.e("s_lshl_b32 s34, s29, 1")
            a.e("s_lshl_b32 s35, s32, 7")
            a.e("s_add_u32 s34, s34, s35")
            a.e("s_waitcnt lgkmcnt(0)")
            for it in range(8):
                a.e(f"ds_read_b128 {vr(AC+4*it,4)}, v30 offset:{it*8*144}")
            for it in range(8):
                a.e(f"s_waitcnt lgkmcnt({7-it})")
                a.e(f"s_add_u32 s35, s34, {it*8*3584}")
                a.e(f"buffer_store_dwordx4 {vr(AC+4*it,4)}, v28, s[20:23], s35 offen sc1")
    stamp(a, 5)
    stamp_flush(a, 6, 8, name, slot)
    a.lab(f"L_{name}_end")
    a.e("s_endpgm")
    nacc = 88 if LN else MT * NT * 4
    desc = kernel_desc(name, 128 + nacc, 128 + nacc)
    return a.L, desc, LDS, NWG
```

```python
from gen import *
import gen

def attn2(name, slot=0):
    a = Asm()
    U = 8
    CONST = 131072
    NCROWS = (U + 1) * 32 + 8
    KMX = CONST + NCROWS * 32
    LDS = KMX + 64
    kernel_head(a, name)
    a.e("s_cmp_ge_u32 s2, 256")
    a.e(f"s_cbranch_scc1 L_{name}_end")
    stamp(a, 0)
    a.e(f"s_load_dwordx2 s[4:5], s[0:1], {KA['ws']}")
    a.e(f"s_load_dwordx2 s[44:45], s[0:1], {KA['wo']}")
    a.e(f"s_load_dwordx2 s[46:47], s[0:1], {KA['w1']}")
    a.e(f"s_load_dwordx2 s[48:49], s[0:1], {KA['w2']}")
    a.e("v_and_b32 v1, 63, v0")
    a.e("v_lshrrev_b32 v114, 6, v0")
    a.nop(1)
    a.e("v_readfirstlane_b32 s30, v114")
    a.e("s_and_b32 s34, s2, 7")
    a.e("s_lshr_b32 s35, s2, 3")
    a.e("s_lshr_b32 s36, s35, 3")
    a.e("s_lshl_b32 s34, s34, 2")
    a.e("s_add_u32 s28, s34, s36")
    a.e("s_and_b32 s29, s35, 7")
    a.e("s_lshl_b32 s31, s28, 16")
    a.e("v_lshlrev_b32 v114, 4, v1")
    a.e("s_lshl_b32 s32, s30, 13")
    a.e("s_waitcnt lgkmcnt(0)")
    srd(a, 8, 4, 6 * MB)
    srd(a, 12, 4, 2 * MB, WS_O)
    a.e("s_add_u32 s38, s31, s32")
    for i in range(8):
        a.e(f"s_add_u32 s34, s38, 0x{WS_K + i*1024:x}")
        a.e(f"s_add_u32 m0, s32, 0x{i*1024:x}")
        a.nop(1)
        a.e("buffer_load_dwordx4 v114, s[8:11], s34 offen lds")
    a.e("v_and_b32 v115, 31, v0")
    a.e("v_lshlrev_b32 v115, 5, v115")
    a.e("v_bfe_u32 v116, v0, 5, 1")
    a.e("v_lshl_add_u32 v2, v116, 4, v115")
    a.e("s_lshl_b32 s36, s29, 13")
    a.e("s_lshl_b32 s37, s30, 10")
    a.e("s_add_u32 s36, s36, s37")
    a.e("s_add_u32 s36, s36, s31")
    a.e("buffer_load_dwordx4 v[8:11], v2, s[8:11], s36 offen")
    a.e("s_lshl_b32 s37, s30, 11")
    a.e("s_add_u32 s38, s31, s37")
    for qd in range(4):
        for i in range(2):
            a.e(f"s_add_u32 s34, s38, 0x{WS_V + qd*16384 + i*1024:x}")
            a.e(f"s_add_u32 m0, s37, 0x{65536 + qd*16384 + i*1024:x}")
            a.nop(1)
            a.e("buffer_load_dwordx4 v114, s[8:11], s34 offen lds")
    a.e("s_cmp_lt_u32 s2, 32")
    a.e(f"s_cbranch_scc1 L_{name}_pfa")
    a.e("s_cmp_lt_u32 s2, 144")
    a.e(f"s_cbranch_scc1 L_{name}_pfb")
    srd(a, 52, 48, 1792 * 1024)
    a.e("s_sub_u32 s34, s2, 144")
    a.e(f"s_branch L_{name}_pfc")
    a.lab(f"L_{name}_pfa")
    srd(a, 52, 44, 512 * 1024)
    a.e("s_mov_b32 s34, s2")
    a.e(f"s_branch L_{name}_pfc")
    a.lab(f"L_{name}_pfb")
    srd(a, 52, 46, 1792 * 1024)
    a.e("s_sub_u32 s34, s2, 32")
    a.lab(f"L_{name}_pfc")
    a.e("s_lshl_b32 s34, s34, 14")
    a.e("s_add_u32 s34, s34, s37")
    a.e("buffer_load_dwordx4 v[124:127], v114, s[52:55], s34 offen")
    a.e("buffer_load_dwordx4 v[124:127], v114, s[52:55], s34 offen offset:1024")
    a.e(f"v_cmp_gt_u32 vcc, {NCROWS}, v0")
    a.e("v_mov_b32 v116, 0x3f80")
    for k in range(117, 124):
        a.e(f"v_mov_b32 v{k}, 0")
    a.e("v_lshlrev_b32 v115, 5, v0")
    a.e(f"v_add_u32 v115, 0x{CONST:x}, v115")
    a.e("s_and_saveexec_b64 s[40:41], vcc")
    a.e(f"s_cbranch_execz L_{name}_nofill")
    a.e("ds_write_b128 v115, v[116:119]")
    a.e("ds_write_b128 v115, v[120:123] offset:16")
    a.lab(f"L_{name}_nofill")
    a.e("s_mov_b64 exec, s[40:41]")
    a.e("v_bfe_u32 v115, v0, 2, 2")
    a.e("v_and_b32 v116, 3, v0")
    a.e("v_lshlrev_b32 v115, 5, v115")
    a.e("v_lshl_add_u32 v115, v116, 3, v115")
    a.e("v_bfe_u32 v116, v0, 5, 1")
    a.e("v_lshlrev_b32 v117, 7, v116")
    a.e("v_add_u32 v118, 0x10000, v117")
    a.e(f"v_sub_u32 v119, 0x{CONST+128:x}, v117")
    a.e("v_bfe_u32 v116, v0, 4, 1")
    a.e("v_cmp_eq_u32 vcc, 1, v116")
    a.e(f"v_mov_b32 v120, {U*1024}")
    a.e("v_mov_b32 v121, 0")
    a.nop(1)
    a.e("v_cndmask_b32 v118, v118, v119, vcc")
    a.e("v_cndmask_b32 v4, v120, v121, vcc")
    a.e("v_add_u32 v6, v118, v115")
    S = (32, 48)
    Kf = (72, 76)
    Vf = (80, 88)
    a.e("s_mov_b32 s42, 0")
    a.e("s_waitcnt vmcnt(10)")
    stamp(a, 1)
    a.e("v_lshlrev_b32 v115, 5, v1")
    a.e("v_add_u32 v115, s32, v115")
    for i in range(4):
        a.e(f"ds_read_b128 {vr(32+8*i,4)}, v115 offset:{i*2048}")
        a.e(f"ds_read_b128 {vr(36+8*i,4)}, v115 offset:{i*2048+16}")
    a.e("v_mov_b32 v116, 0")
    for k in range(4):
        a.e(f"v_dot2_f32_bf16 v116, v{8+k}, v{8+k}, v116")
    for i in range(4):
        a.e(f"v_mov_b32 v{64+i}, 0")
    a.e("s_waitcnt lgkmcnt(0)")
    for k in range(8):
        for i in range(4):
            a.e(f"v_dot2_f32_bf16 v{64+i}, v{32+8*i+k}, v{32+8*i+k}, v{64+i}")
    a.nop(3)
    a.e("v_max_f32 v64, v64, v65")
    a.e("v_max_f32 v66, v66, v67")
    a.e("v_max_f32 v64, v64, v66")
    a.nop(1)
    a.e("v_mov_b32 v65, v64")
    a.e("v_mov_b32 v117, v116")
    a.nop(2)
    a.e("v_permlane32_swap_b32 v64, v65")
    a.e("v_permlane32_swap_b32 v116, v117")
    a.nop(2)
    a.e("v_max_f32 v64, v64, v65")
    a.e("v_add_f32 v116, v116, v117")
    a.nop(1)
    a.e("v_mov_b32 v65, v64")
    a.nop(2)
    a.e("v_permlane16_swap_b32 v64, v65")
    a.nop(2)
    a.e("v_max_f32 v64, v64, v65")
    a.nop(2)
    for sh in (1, 2, 4, 8):
        a.e(f"v_max_f32_dpp v64, v64, v64 row_ror:{sh} row_mask:0xf bank_mask:0xf")
        a.nop(2)
    a.e("s_lshl_b32 s34, s30, 2")
    a.e(f"s_add_u32 s34, s34, 0x{KMX:x}")
    a.e("v_mov_b32 v65, s34")
    a.e("ds_write_b32 v65, v64")
    a.e("s_waitcnt vmcnt(8) lgkmcnt(0)")
    a.e("s_barrier")
    a.e(f"v_mov_b32 v65, 0x{KMX:x}")
    a.e("ds_read_b128 v[32:35], v65")
    a.e("ds_read_b128 v[36:39], v65 offset:16")
    a.e("s_waitcnt lgkmcnt(0)")
    a.e("v_max3_f32 v32, v32, v33, v34")
    a.e("v_max3_f32 v36, v36, v37, v38")
    a.e("v_max3_f32 v32, v32, v35, v39")
    a.e("v_max_f32 v32, v32, v36")
    a.e("v_mul_f32 v116, v116, v32")
    a.e("v_sqrt_f32 v116, v116")
    a.nop(1)
    a.e(f"v_mul_f32 v112, {f32(-(1.0 + 2.0**-7))}, v116")
    stamp(a, 2)
    a.lab(f"L_{name}_main")
    for k in range(16):
        a.e(f"v_mov_b32 v{16+k}, v112")
    for k in range(16):
        a.e(f"v_mov_b32 v{96+k}, 0")
    a.e("v_mov_b32 v5, v2")
    a.e("v_mov_b32 v3, v6")
    a.e(f"ds_read_b128 {vr(Kf[0],4)}, v5")
    a.e("s_waitcnt lgkmcnt(0)")
    a.e(f"v_mfma_f32_32x32x16_bf16 {vr(S[0],16)}, {vr(Kf[0],4)}, v[8:11], v[16:31]")
    a.e(f"ds_read_b128 {vr(Kf[1],4)}, v5 offset:1024")
    def vreads(buf, tile_imm):
        out = []
        for m in range(2):
            for aa in range(2):
                out.append(f"ds_read_b64_tr_b16 {vr(Vf[buf]+4*m+2*aa,2)}, v3 offset:{tile_imm*1024 + (16*m+8*aa)*32}")
        return out
    for r in vreads(0, 0):
        a.e(r)
    a.e("s_mov_b32 s33, 0")
    a.nop(4)
    a.lab(f"L_{name}_p2")
    a.e("s_cmp_lg_u32 s42, 0")
    a.e(f"s_cbranch_scc1 L_{name}_nob")
    a.e("s_cmp_eq_u32 s33, 1")
    a.e(f"s_cbranch_scc1 L_{name}_w4")
    a.e("s_cmp_eq_u32 s33, 3")
    a.e(f"s_cbranch_scc1 L_{name}_w2")
    a.e("s_cmp_lg_u32 s33, 5")
    a.e(f"s_cbranch_scc1 L_{name}_bar")
    a.e("s_waitcnt vmcnt(2)")
    a.e(f"s_branch L_{name}_bar")
    a.lab(f"L_{name}_w4")
    a.e("s_waitcnt vmcnt(6)")
    a.e(f"s_branch L_{name}_bar")
    a.lab(f"L_{name}_w2")
    a.e("s_waitcnt vmcnt(4)")
    a.lab(f"L_{name}_bar")
    a.e("s_barrier")
    a.lab(f"L_{name}_nob")
    for tt in range(U):
        b = tt & 1
        sb = S[b]
        a.e("s_waitcnt lgkmcnt(4)")
        a.e(f"v_mfma_f32_32x32x16_bf16 {vr(S[b^1],16)}, {vr(Kf[b^1],4)}, v[8:11], v[16:31]")
        a.e(f"ds_read_b128 {vr(Kf[b],4)}, v5 offset:{(tt+2)*1024}")
        vl = vreads(b ^ 1, tt + 1)
        for half in range(2):
            o = 8 * half
            a.e(f"v_exp_f32 v{sb+o}, v{sb+o}")
            a.e(f"v_exp_f32 v{sb+o+1}, v{sb+o+1}")
            a.e(f"v_exp_f32 v{sb+o+2}, v{sb+o+2}")
            a.e(f"v_exp_f32 v{sb+o+3}, v{sb+o+3}")
            a.e(f"v_cvt_pk_bf16_f32 v{64+4*half}, v{sb+o}, v{sb+o+1}")
            a.e(f"v_exp_f32 v{sb+o+4}, v{sb+o+4}")
            a.e(f"v_exp_f32 v{sb+o+5}, v{sb+o+5}")
            a.e(f"v_cvt_pk_bf16_f32 v{65+4*half}, v{sb+o+2}, v{sb+o+3}")
            a.e(f"v_exp_f32 v{sb+o+6}, v{sb+o+6}")
            a.e(f"v_exp_f32 v{sb+o+7}, v{sb+o+7}")
            a.e(f"v_cvt_pk_bf16_f32 v{66+4*half}, v{sb+o+4}, v{sb+o+5}")
            if half == 0:
                a.e(vl[0]); a.e(vl[1])
                a.e(f"v_cvt_pk_bf16_f32 v67, v{sb+6}, v{sb+7}")
                a.e(vl[2]); a.e(vl[3])
                a.e("s_waitcnt lgkmcnt(5)")
            else:
                a.e(f"v_cvt_pk_bf16_f32 v71, v{sb+14}, v{sb+15}")
                a.nop(2)
            a.e(f"v_mfma_f32_32x32x16_bf16 v[96:111], {vr(Vf[b]+4*half,4)}, {vr(64+4*half,4)}, v[96:111]")
    a.e(f"v_add_u32 v5, {U*1024}, v5")
    a.e("v_add_u32 v3, v4, v3")
    a.e("s_add_u32 s33, s33, 1")
    a.e("s_cmp_lg_u32 s33, 8")
    a.e(f"s_cbranch_scc1 L_{name}_p2")
    stamp(a, 4)
    a.nop(16)
    a.e("v_mov_b32 v113, v104")
    a.e("v_mov_b32 v114, v104")
    a.nop(2)
    a.e("v_permlane32_swap_b32 v113, v114")
    a.nop(2)
    a.e("s_cmp_lg_u32 s42, 0")
    a.e(f"s_cbranch_scc1 L_{name}_fin")
    a.e(f"v_cmp_nge_f32 vcc, v113, v115") if False else None
    import os
    a.e(f"v_mov_b32 v115, {f32(1e30 if os.environ.get('FORCE_FB') else 2.0**-64)}")
    a.e("v_cmp_nge_f32 vcc, v113, v115")
    a.nop(5)
    a.e(f"s_cbranch_vccz L_{name}_fin")
    a.e("s_mov_b32 s42, 16")
    for k in range(16):
        a.e(f"v_mov_b32 v{48+k}, 0xff7fffff")
    a.e("v_mov_b32 v112, 0xff7fffff")
    a.e("v_mov_b32 v113, 0xff7fffff")
    a.e("s_waitcnt lgkmcnt(0)")
    a.e("v_mov_b32 v5, v2")
    a.e(f"ds_read_b128 {vr(Kf[0],4)}, v5")
    a.e(f"ds_read_b128 {vr(Kf[1],4)}, v5 offset:1024")
    a.e("s_mov_b32 s33, 8")
    def maxes(sb):
        for k in range(0, 16, 4):
            a.e(f"v_max3_f32 v112, v{sb+k}, v{sb+k+1}, v112")
            a.e(f"v_max3_f32 v113, v{sb+k+2}, v{sb+k+3}, v113")
    a.lab(f"L_{name}_p1")
    for tt in range(U):
        b = tt & 1
        a.e("s_waitcnt lgkmcnt(1)")
        a.e(f"v_mfma_f32_32x32x16_bf16 {vr(S[b],16)}, {vr(Kf[b],4)}, v[8:11], 0")
        a.e(f"ds_read_b128 {vr(Kf[b],4)}, v5 offset:{(tt+2)*1024}")
        a.nop(1)
        maxes(S[b ^ 1])
    a.e(f"v_add_u32 v5, {U*1024}, v5")
    a.e("s_sub_u32 s33, s33, 1")
    a.e("s_cmp_lg_u32 s33, 0")
    a.e(f"s_cbranch_scc1 L_{name}_p1")
    a.nop(12)
    maxes(S[1])
    a.e("v_max_f32 v112, v112, v113")
    a.nop(1)
    a.e("v_mov_b32 v113, v112")
    a.nop(2)
    a.e("v_permlane32_swap_b32 v112, v113")
    a.nop(2)
    a.e("v_max_f32 v112, v112, v113")
    a.e("v_sub_f32 v112, 0, v112")
    a.e("s_waitcnt lgkmcnt(0)")
    a.e(f"s_branch L_{name}_main")
    a.lab(f"L_{name}_fin")
    a.e("v_rcp_f32 v113, v113")
    a.nop(1)
    for k in range(8):
        a.e(f"v_mul_f32 v{96+k}, v{96+k}, v113")
    for k in range(4):
        a.e(f"v_cvt_pk_bf16_f32 v{116+k}, v{96+2*k}, v{97+2*k}")
    a.e("v_and_b32 v114, 31, v0")
    a.e("v_lshlrev_b32 v114, 10, v114")
    a.e("v_bfe_u32 v115, v0, 5, 1")
    a.e("v_lshl_add_u32 v114, v115, 3, v114")
    a.e("s_lshl_b32 s36, s29, 18")
    a.e("s_lshl_b32 s37, s30, 15")
    a.e("s_add_u32 s36, s36, s37")
    a.e("s_lshl_b32 s37, s28, 5")
    a.e("s_add_u32 s36, s36, s37")
    a.e("buffer_store_dwordx2 v[116:117], v114, s[12:15], s36 offen")
    a.e("buffer_store_dwordx2 v[118:119], v114, s[12:15], s36 offen offset:16")
    stamp(a, 5)
    stamp_flush(a, 6, 4, name, slot)
    a.lab(f"L_{name}_end")
    a.e("s_endpgm")
    import os
    ex = os.environ.get("ATTN_EXP")
    if ex:
        i0 = a.L.index(f"L_{name}_nob:"); i1 = a.L.index(f"    s_cbranch_scc1 L_{name}_p2")
        keep = []
        for k, l in enumerate(a.L):
            if i0 < k < i1:
                if ex == "nolds" and ("ds_read" in l): continue
                if ex == "nomfma" and ("v_mfma" in l): continue
                if ex == "nocvt" and ("v_cvt_pk" in l): continue
                if ex == "noexp" and ("v_exp" in l): continue
                if ex == "nopv" and ("v_mfma" in l and "v[96:111]" in l): continue
            if "s_cbranch_vccz" in l:
                l = l.replace("s_cbranch_vccz", "s_branch")
            keep.append(l)
        a.L = keep
    desc = kernel_desc(name, 128, 128)
    return a.L, desc, LDS, 256
```

```python
from gen import *
import gen

def attn2(name, slot=0):
    a = Asm()
    U = 8
    CONST = 131072
    NCROWS = (U + 1) * 32 + 8
    KMX = CONST + NCROWS * 32
    LDS = KMX + 64
    kernel_head(a, name)
    a.e("s_cmp_ge_u32 s2, 256")
    a.e(f"s_cbranch_scc1 L_{name}_end")
    stamp(a, 0)
    a.e(f"s_load_dwordx2 s[4:5], s[0:1], {KA['ws']}")
    a.e(f"s_load_dwordx2 s[44:45], s[0:1], {KA['wo']}")
    a.e(f"s_load_dwordx2 s[46:47], s[0:1], {KA['w1']}")
    a.e(f"s_load_dwordx2 s[48:49], s[0:1], {KA['w2']}")
    a.e("v_and_b32 v1, 63, v0")
    a.e("v_lshrrev_b32 v114, 6, v0")
    a.nop(1)
    a.e("v_readfirstlane_b32 s30, v114")
    a.e("s_and_b32 s34, s2, 7")
    a.e("s_lshr_b32 s35, s2, 3")
    a.e("s_lshr_b32 s36, s35, 3")
    a.e("s_lshl_b32 s34, s34, 2")
    a.e("s_add_u32 s28, s34, s36")
    a.e("s_and_b32 s29, s35, 7")
    a.e("s_lshl_b32 s31, s28, 16")
    a.e("v_lshlrev_b32 v114, 4, v1")
    a.e("s_lshl_b32 s32, s30, 13")
    a.e("s_waitcnt lgkmcnt(0)")
    srd(a, 8, 4, 6 * MB)
    srd(a, 12, 4, 2 * MB, WS_O)
    a.e("s_add_u32 s38, s31, s32")
    for i in range(8):
        a.e(f"s_add_u32 s34, s38, 0x{WS_K + i*1024:x}")
        a.e(f"s_add_u32 m0, s32, 0x{i*1024:x}")
        a.nop(1)
        a.e("buffer_load_dwordx4 v114, s[8:11], s34 offen lds")
    a.e("v_and_b32 v115, 31, v0")
    a.e("v_lshlrev_b32 v115, 5, v115")
    a.e("v_bfe_u32 v116, v0, 5, 1")
    a.e("v_lshl_add_u32 v2, v116, 4, v115")
    a.e("s_lshl_b32 s36, s29, 13")
    a.e("s_lshl_b32 s37, s30, 10")
    a.e("s_add_u32 s36, s36, s37")
    a.e("s_add_u32 s36, s36, s31")
    a.e("buffer_load_dwordx4 v[8:11], v2, s[8:11], s36 offen")
    a.e("s_lshl_b32 s37, s30, 11")
    a.e("s_add_u32 s38, s31, s37")
    for qd in range(4):
        for i in range(2):
            a.e(f"s_add_u32 s34, s38, 0x{WS_V + qd*16384 + i*1024:x}")
            a.e(f"s_add_u32 m0, s37, 0x{65536 + qd*16384 + i*1024:x}")
            a.nop(1)
            a.e("buffer_load_dwordx4 v114, s[8:11], s34 offen lds")
    a.e("s_cmp_lt_u32 s2, 32")
    a.e(f"s_cbranch_scc1 L_{name}_pfa")
    a.e("s_cmp_lt_u32 s2, 144")
    a.e(f"s_cbranch_scc1 L_{name}_pfb")
    srd(a, 52, 48, 1792 * 1024)
    a.e("s_sub_u32 s34, s2, 144")
    a.e(f"s_branch L_{name}_pfc")
    a.lab(f"L_{name}_pfa")
    srd(a, 52, 44, 512 * 1024)
    a.e("s_mov_b32 s34, s2")
    a.e(f"s_branch L_{name}_pfc")
    a.lab(f"L_{name}_pfb")
    srd(a, 52, 46, 1792 * 1024)
    a.e("s_sub_u32 s34, s2, 32")
    a.lab(f"L_{name}_pfc")
    a.e("s_lshl_b32 s34, s34, 14")
    a.e("s_add_u32 s34, s34, s37")
    a.e("buffer_load_dwordx4 v[124:127], v114, s[52:55], s34 offen")
    a.e("buffer_load_dwordx4 v[124:127], v114, s[52:55], s34 offen offset:1024")
    a.e(f"v_cmp_gt_u32 vcc, {NCROWS}, v0")
    a.e("v_mov_b32 v116, 0x3f80")
    for k in range(117, 124):
        a.e(f"v_mov_b32 v{k}, 0")
    a.e("v_lshlrev_b32 v115, 5, v0")
    a.e(f"v_add_u32 v115, 0x{CONST:x}, v115")
    a.e("s_and_saveexec_b64 s[40:41], vcc")
    a.e(f"s_cbranch_execz L_{name}_nofill")
    a.e("ds_write_b128 v115, v[116:119]")
    a.e("ds_write_b128 v115, v[120:123] offset:16")
    a.lab(f"L_{name}_nofill")
    a.e("s_mov_b64 exec, s[40:41]")
    a.e("v_bfe_u32 v115, v0, 2, 2")
    a.e("v_and_b32 v116, 3, v0")
    a.e("v_lshlrev_b32 v115, 5, v115")
    a.e("v_lshl_add_u32 v115, v116, 3, v115")
    a.e("v_bfe_u32 v116, v0, 5, 1")
    a.e("v_lshlrev_b32 v117, 7, v116")
    a.e("v_add_u32 v118, 0x10000, v117")
    a.e(f"v_sub_u32 v119, 0x{CONST+128:x}, v117")
    a.e("v_bfe_u32 v116, v0, 4, 1")
    a.e("v_cmp_eq_u32 vcc, 1, v116")
    a.e(f"v_mov_b32 v120, {U*1024}")
    a.e("v_mov_b32 v121, 0")
    a.nop(1)
    a.e("v_cndmask_b32 v118, v118, v119, vcc")
    a.e("v_cndmask_b32 v4, v120, v121, vcc")
    a.e("v_add_u32 v6, v118, v115")
    S = (32, 48)
    Kf = (72, 76)
    Vf = (80, 88)
    a.e("s_mov_b32 s42, 0")
    a.e("s_waitcnt vmcnt(10)")
    stamp(a, 1)
    a.e("v_lshlrev_b32 v115, 5, v1")
    a.e("v_add_u32 v115, s32, v115")
    for i in range(4):
        a.e(f"ds_read_b128 {vr(32+8*i,4)}, v115 offset:{i*2048}")
        a.e(f"ds_read_b128 {vr(36+8*i,4)}, v115 offset:{i*2048+16}")
    a.e("v_mov_b32 v116, 0")
    for k in range(4):
        a.e(f"v_dot2_f32_bf16 v116, v{8+k}, v{8+k}, v116")
    for i in range(4):
        a.e(f"v_mov_b32 v{64+i}, 0")
    a.e("s_waitcnt lgkmcnt(0)")
    for k in range(8):
        for i in range(4):
            a.e(f"v_dot2_f32_bf16 v{64+i}, v{32+8*i+k}, v{32+8*i+k}, v{64+i}")
    a.nop(3)
    a.e("v_max_f32 v64, v64, v65")
    a.e("v_max_f32 v66, v66, v67")
    a.e("v_max_f32 v64, v64, v66")
    a.nop(1)
    a.e("v_mov_b32 v65, v64")
    a.e("v_mov_b32 v117, v116")
    a.nop(2)
    a.e("v_permlane32_swap_b32 v64, v65")
    a.e("v_permlane32_swap_b32 v116, v117")
    a.nop(2)
    a.e("v_max_f32 v64, v64, v65")
    a.e("v_add_f32 v116, v116, v117")
    a.nop(1)
    a.e("v_mov_b32 v65, v64")
    a.nop(2)
    a.e("v_permlane16_swap_b32 v64, v65")
    a.nop(2)
    a.e("v_max_f32 v64, v64, v65")
    a.nop(2)
    for sh in (1, 2, 4, 8):
        a.e(f"v_max_f32_dpp v64, v64, v64 row_ror:{sh} row_mask:0xf bank_mask:0xf")
        a.nop(2)
    a.e("s_lshl_b32 s34, s30, 2")
    a.e(f"s_add_u32 s34, s34, 0x{KMX:x}")
    a.e("v_mov_b32 v65, s34")
    a.e("ds_write_b32 v65, v64")
    a.e("s_waitcnt vmcnt(8) lgkmcnt(0)")
    a.e("s_barrier")
    a.e(f"v_mov_b32 v65, 0x{KMX:x}")
    a.e("ds_read_b128 v[32:35], v65")
    a.e("ds_read_b128 v[36:39], v65 offset:16")
    a.e("s_waitcnt lgkmcnt(0)")
    a.e("v_max3_f32 v32, v32, v33, v34")
    a.e("v_max3_f32 v36, v36, v37, v38")
    a.e("v_max3_f32 v32, v32, v35, v39")
    a.e("v_max_f32 v32, v32, v36")
    a.e("v_mul_f32 v116, v116, v32")
    a.e("v_sqrt_f32 v116, v116")
    a.nop(1)
    a.e(f"v_mul_f32 v112, {f32(-(1.0 + 2.0**-7))}, v116")
    stamp(a, 2)
    import os
    if os.environ.get("PRIO"):
        a.e("s_cmp_lt_u32 s30, 4")
        a.e(f"s_cbranch_scc1 L_{name}_np")
        a.e("s_setprio 1")
        a.lab(f"L_{name}_np")
    a.lab(f"L_{name}_main")
    for k in range(16):
        a.e(f"v_mov_b32 v{16+k}, v112")
    for k in range(16):
        a.e(f"v_mov_b32 v{96+k}, 0")
    a.e("v_mov_b32 v5, v2")
    a.e("v_mov_b32 v3, v6")
    a.e(f"ds_read_b128 {vr(Kf[0],4)}, v5")
    a.e("s_waitcnt lgkmcnt(0)")
    a.e(f"v_mfma_f32_32x32x16_bf16 {vr(S[0],16)}, {vr(Kf[0],4)}, v[8:11], v[16:31]")
    a.e(f"ds_read_b128 {vr(Kf[1],4)}, v5 offset:1024")
    def vreads(buf, tile_imm):
        out = []
        for m in range(2):
            for aa in range(2):
                out.append(f"ds_read_b64_tr_b16 {vr(Vf[buf]+4*m+2*aa,2)}, v3 offset:{tile_imm*1024 + (16*m+8*aa)*32}")
        return out
    for r in vreads(0, 0):
        a.e(r)
    a.e("s_mov_b32 s33, 0")
    a.nop(4)
    a.lab(f"L_{name}_p2")
    a.e("s_cmp_lg_u32 s42, 0")
    a.e(f"s_cbranch_scc1 L_{name}_nob")
    a.e("s_cmp_eq_u32 s33, 1")
    a.e(f"s_cbranch_scc1 L_{name}_w4")
    a.e("s_cmp_eq_u32 s33, 3")
    a.e(f"s_cbranch_scc1 L_{name}_w2")
    a.e("s_cmp_lg_u32 s33, 5")
    a.e(f"s_cbranch_scc1 L_{name}_bar")
    a.e("s_waitcnt vmcnt(2)")
    a.e(f"s_branch L_{name}_bar")
    a.lab(f"L_{name}_w4")
    a.e("s_waitcnt vmcnt(6)")
    a.e(f"s_branch L_{name}_bar")
    a.lab(f"L_{name}_w2")
    a.e("s_waitcnt vmcnt(4)")
    a.lab(f"L_{name}_bar")
    a.e("s_barrier")
    a.lab(f"L_{name}_nob")
    for tt in range(U):
        b = tt & 1
        sb = S[b]
        a.e("s_waitcnt lgkmcnt(4)")
        a.e(f"v_mfma_f32_32x32x16_bf16 {vr(S[b^1],16)}, {vr(Kf[b^1],4)}, v[8:11], v[16:31]")
        a.e(f"ds_read_b128 {vr(Kf[b],4)}, v5 offset:{(tt+2)*1024}")
        vl = vreads(b ^ 1, tt + 1)
        for half in range(2):
            o = 8 * half
            a.e(f"v_exp_f32 v{sb+o}, v{sb+o}")
            a.e(f"v_exp_f32 v{sb+o+1}, v{sb+o+1}")
            a.e(f"v_exp_f32 v{sb+o+2}, v{sb+o+2}")
            a.e(f"v_exp_f32 v{sb+o+3}, v{sb+o+3}")
            a.e(f"v_cvt_pk_bf16_f32 v{64+4*half}, v{sb+o}, v{sb+o+1}")
            a.e(f"v_exp_f32 v{sb+o+4}, v{sb+o+4}")
            a.e(f"v_exp_f32 v{sb+o+5}, v{sb+o+5}")
            a.e(f"v_cvt_pk_bf16_f32 v{65+4*half}, v{sb+o+2}, v{sb+o+3}")
            a.e(f"v_exp_f32 v{sb+o+6}, v{sb+o+6}")
            a.e(f"v_exp_f32 v{sb+o+7}, v{sb+o+7}")
            a.e(f"v_cvt_pk_bf16_f32 v{66+4*half}, v{sb+o+4}, v{sb+o+5}")
            if half == 0:
                a.e(vl[0]); a.e(vl[1])
                a.e(f"v_cvt_pk_bf16_f32 v67, v{sb+6}, v{sb+7}")
                a.e(vl[2]); a.e(vl[3])
                a.e("s_waitcnt lgkmcnt(5)")
            else:
                a.e(f"v_cvt_pk_bf16_f32 v71, v{sb+14}, v{sb+15}")
                a.nop(2)
            a.e(f"v_mfma_f32_32x32x16_bf16 v[96:111], {vr(Vf[b]+4*half,4)}, {vr(64+4*half,4)}, v[96:111]")
    a.e(f"v_add_u32 v5, {U*1024}, v5")
    a.e("v_add_u32 v3, v4, v3")
    a.e("s_add_u32 s33, s33, 1")
    a.e("s_cmp_lg_u32 s33, 8")
    a.e(f"s_cbranch_scc1 L_{name}_p2")
    stamp(a, 4)
    a.nop(16)
    a.e("v_mov_b32 v113, v104")
    a.e("v_mov_b32 v114, v104")
    a.nop(2)
    a.e("v_permlane32_swap_b32 v113, v114")
    a.nop(2)
    a.e("s_cmp_lg_u32 s42, 0")
    a.e(f"s_cbranch_scc1 L_{name}_fin")
    a.e(f"v_cmp_nge_f32 vcc, v113, v115") if False else None
    import os
    a.e(f"v_mov_b32 v115, {f32(1e30 if os.environ.get('FORCE_FB') else 2.0**-64)}")
    a.e("v_cmp_nge_f32 vcc, v113, v115")
    a.nop(5)
    a.e(f"s_cbranch_vccz L_{name}_fin")
    a.e("s_mov_b32 s42, 16")
    for k in range(16):
        a.e(f"v_mov_b32 v{48+k}, 0xff7fffff")
    a.e("v_mov_b32 v112, 0xff7fffff")
    a.e("v_mov_b32 v113, 0xff7fffff")
    a.e("s_waitcnt lgkmcnt(0)")
    a.e("v_mov_b32 v5, v2")
    a.e(f"ds_read_b128 {vr(Kf[0],4)}, v5")
    a.e(f"ds_read_b128 {vr(Kf[1],4)}, v5 offset:1024")
    a.e("s_mov_b32 s33, 8")
    def maxes(sb):
        for k in range(0, 16, 4):
            a.e(f"v_max3_f32 v112, v{sb+k}, v{sb+k+1}, v112")
            a.e(f"v_max3_f32 v113, v{sb+k+2}, v{sb+k+3}, v113")
    a.lab(f"L_{name}_p1")
    for tt in range(U):
        b = tt & 1
        a.e("s_waitcnt lgkmcnt(1)")
        a.e(f"v_mfma_f32_32x32x16_bf16 {vr(S[b],16)}, {vr(Kf[b],4)}, v[8:11], 0")
        a.e(f"ds_read_b128 {vr(Kf[b],4)}, v5 offset:{(tt+2)*1024}")
        a.nop(1)
        maxes(S[b ^ 1])
    a.e(f"v_add_u32 v5, {U*1024}, v5")
    a.e("s_sub_u32 s33, s33, 1")
    a.e("s_cmp_lg_u32 s33, 0")
    a.e(f"s_cbranch_scc1 L_{name}_p1")
    a.nop(12)
    maxes(S[1])
    a.e("v_max_f32 v112, v112, v113")
    a.nop(1)
    a.e("v_mov_b32 v113, v112")
    a.nop(2)
    a.e("v_permlane32_swap_b32 v112, v113")
    a.nop(2)
    a.e("v_max_f32 v112, v112, v113")
    a.e("v_sub_f32 v112, 0, v112")
    a.e("s_waitcnt lgkmcnt(0)")
    a.e(f"s_branch L_{name}_main")
    a.lab(f"L_{name}_fin")
    a.e("v_rcp_f32 v113, v113")
    a.nop(1)
    for k in range(8):
        a.e(f"v_mul_f32 v{96+k}, v{96+k}, v113")
    for k in range(4):
        a.e(f"v_cvt_pk_bf16_f32 v{116+k}, v{96+2*k}, v{97+2*k}")
    a.e("v_and_b32 v114, 31, v0")
    a.e("v_lshlrev_b32 v114, 10, v114")
    a.e("v_bfe_u32 v115, v0, 5, 1")
    a.e("v_lshl_add_u32 v114, v115, 3, v114")
    a.e("s_lshl_b32 s36, s29, 18")
    a.e("s_lshl_b32 s37, s30, 15")
    a.e("s_add_u32 s36, s36, s37")
    a.e("s_lshl_b32 s37, s28, 5")
    a.e("s_add_u32 s36, s36, s37")
    a.e("buffer_store_dwordx2 v[116:117], v114, s[12:15], s36 offen")
    a.e("buffer_store_dwordx2 v[118:119], v114, s[12:15], s36 offen offset:16")
    stamp(a, 5)
    stamp_flush(a, 6, 4, name, slot)
    a.lab(f"L_{name}_end")
    a.e("s_endpgm")
    import os
    ex = os.environ.get("ATTN_EXP")
    if ex:
        i0 = a.L.index(f"L_{name}_nob:"); i1 = a.L.index(f"    s_cbranch_scc1 L_{name}_p2")
        keep = []
        for k, l in enumerate(a.L):
            if i0 < k < i1:
                if ex == "nolds" and ("ds_read" in l): continue
                if ex == "nomfma" and ("v_mfma" in l): continue
                if ex == "nocvt" and ("v_cvt_pk" in l): continue
                if ex == "noexp" and ("v_exp" in l): continue
                if ex == "nopv" and ("v_mfma" in l and "v[96:111]" in l): continue
            if "s_cbranch_vccz" in l:
                l = l.replace("s_cbranch_vccz", "s_branch")
            keep.append(l)
        a.L = keep
    desc = kernel_desc(name, 128, 128)
    return a.L, desc, LDS, 256
```

```python
from gen import *
import gen

def gemm2(name, mode, variants, slot=0):
    a = Asm()
    LN = mode in ("qkv", "ffn1")
    if LN:
        TM = TN = 128; KC = 64; K = 512
        WROW = 3072 if mode == "qkv" else 3584
        NCB = 12 if mode == "qkv" else 14
        NWG = 16 * NCB
        AROW = 1024
    else:
        TM = TN = 64; KC = 128
        K = 512 if mode == "wo" else 1792
        WROW = 1024
        NWG = 256
        AROW = K * 2
    RA = KC * 2; RB = TN * 2
    ASZ = TM * RA; BSZ = KC * RB
    SLOTB = ASZ + BSZ
    NST = K // KC
    NSLOT = min(4, NST)
    KS = KC // 32
    WM = TM // 2; MT = WM // 16; NT = TN // 32
    EXS = NSLOT * SLOTB
    EXC = EXS + 1024
    LDS = EXS + (2048 if LN else 0)
    for vi, (kname, src, dst) in enumerate(variants):
        kernel_head(a, kname)
        a.e(f"s_cmp_ge_u32 s2, {NWG}")
        a.e(f"s_cbranch_scc1 L_{name}_end")
        a.e(f"s_load_dwordx2 s[8:9], s[0:1], {KA['ws']}")
        if src == "in":
            a.e(f"s_load_dwordx2 s[4:5], s[0:1], {KA['x']}")
        if dst == "out":
            a.e(f"s_load_dwordx2 s[48:49], s[0:1], {KA['out']}")
        a.e("s_waitcnt lgkmcnt(0)")
        if src != "in":
            a.e(f"s_add_u32 s4, s8, 0x{src:x}")
            a.e("s_addc_u32 s5, s9, 0")
        if dst is not None and dst != "out":
            a.e(f"s_add_u32 s48, s8, 0x{dst:x}")
            a.e("s_addc_u32 s49, s9, 0")
        if vi + 1 < len(variants):
            a.e(f"s_branch L_{name}_body")
    a.lab(f"L_{name}_body")
    stamp(a, 0)
    wkey = dict(qkv="wqkv", ffn1="w1", wo="wo", ffn2="w2")[mode]
    a.e(f"s_load_dwordx2 s[6:7], s[0:1], {KA[wkey]}")
    if mode in ("ffn1", "ffn2"):
        a.e(f"s_load_dwordx2 s[10:11], s[0:1], {KA['b1' if mode=='ffn1' else 'b2']}")
    a.e("v_and_b32 v1, 63, v0")
    a.e("v_and_b32 v2, 15, v0")
    a.e("v_bfe_u32 v3, v0, 4, 2")
    a.e("v_lshrrev_b32 v28, 6, v0")
    a.nop(1)
    a.e("v_readfirstlane_b32 s30, v28")
    a.e("s_and_b32 s34, s2, 7")
    a.e("s_lshr_b32 s35, s2, 3")
    a.e("s_lshr_b32 s55, s30, 2")
    a.e("s_and_b32 s30, s30, 3")
    if LN:
        half = NCB // 2
        mg = 43 if half == 6 else 37
        a.e(f"s_mul_i32 s36, s35, {mg}")
        a.e("s_lshr_b32 s36, s36, 8")
        a.e(f"s_mul_i32 s37, s36, {half}")
        a.e("s_sub_u32 s37, s35, s37")
        a.e("s_lshr_b32 s38, s34, 1")
        a.e("s_lshl_b32 s38, s38, 2")
        a.e("s_add_u32 s38, s38, s36")
        a.e("s_and_b32 s39, s34, 1")
        a.e(f"s_mul_i32 s39, s39, {half}")
        a.e("s_add_u32 s39, s39, s37")
        a.e("s_lshl_b32 s28, s38, 7")
        a.e("s_lshl_b32 s29, s39, 7")
    else:
        a.e("s_lshr_b32 s36, s35, 3")
        a.e("s_lshl_b32 s34, s34, 2")
        a.e("s_add_u32 s34, s34, s36")
        a.e("s_and_b32 s35, s35, 7")
        a.e("s_lshl_b32 s28, s34, 6")
        a.e("s_lshl_b32 s29, s35, 6")
    a.e("s_lshr_b32 s31, s30, 1")
    a.e("s_and_b32 s32, s30, 1")
    a.e("s_waitcnt lgkmcnt(0)")
    if LN:
        srd(a, 12, 4, 2 * MB)
    else:
        srd(a, 12, 8, 2048 * AROW, WS_O if mode == "wo" else WS_H)
    srd(a, 16, 6, K * WROW)
    if mode == "qkv":
        srd(a, 20, 8, 6 * MB)
    elif mode == "ffn1":
        srd(a, 20, 8, 2048 * 3584, WS_H)
    else:
        srd(a, 20, 48, 2 * MB)
    if not LN:
        srd(a, 24, 4, 2 * MB)
    if mode == "ffn1":
        srd(a, 44, 10, 1792 * 2)
    if mode == "ffn2":
        srd(a, 44, 10, 1024)
    VA, VB = 4, 8
    if RA == 128:
        NPA = 2
        a.e("v_lshrrev_b32 v28, 3, v1")
        a.e("v_and_b32 v29, 7, v1")
        a.e("v_lshrrev_b32 v30, 1, v28")
        a.e("v_xor_b32 v29, v29, v30")
        a.e(f"v_mul_u32_u24 v28, 0x{AROW:x}, v28")
        a.e(f"v_lshl_add_u32 v{VA}, v29, 4, v28")
        a.e("v_xor_b32 v29, 4, v29")
        a.e(f"v_lshl_add_u32 v{VA+1}, v29, 4, v28")
    else:
        NPA = 4
        a.e("v_xor_b32 v29, v2, v3")
        a.e(f"v_mul_u32_u24 v28, 0x{AROW:x}, v3")
        for p in range(4):
            a.e(f"v_xor_b32 v30, {4*p}, v29")
            a.e(f"v_lshl_add_u32 v{VA+p}, v30, 4, v28")
    if RB == 256:
        a.e("v_lshrrev_b32 v29, 1, v2")
        a.e("v_xor_b32 v29, v29, v3")
        a.e("v_and_b32 v30, 1, v2")
        a.e("v_lshl_add_u32 v29, v29, 1, v30")
        a.e(f"v_mul_u32_u24 v28, 0x{WROW:x}, v3")
        a.e(f"v_lshl_add_u32 v{VB}, v29, 4, v28")
        a.e("v_xor_b32 v29, 8, v29")
        a.e(f"v_lshl_add_u32 v{VB+1}, v29, 4, v28")
    else:
        a.e("v_lshrrev_b32 v28, 3, v1")
        a.e("v_bfe_u32 v29, v1, 4, 1")
        a.e("v_bfe_u32 v30, v1, 1, 2")
        a.e("v_xor_b32 v30, v30, v29")
        a.e("v_and_b32 v31, 1, v1")
        a.e("v_lshl_add_u32 v31, v30, 1, v31")
        a.e(f"v_mul_u32_u24 v28, 0x{WROW:x}, v28")
        a.e(f"v_lshl_add_u32 v{VB}, v31, 4, v28")
        a.e("v_xor_b32 v31, 4, v31")
        a.e(f"v_lshl_add_u32 v{VB+1}, v31, 4, v28")
    AR = TM // 4; BR = KC // 4
    a.e(f"s_mul_i32 s33, s30, {AR}")
    a.e("s_add_u32 s34, s28, s33")
    a.e(f"s_mul_i32 s50, s34, {AROW}")
    a.e(f"s_mul_i32 s51, s33, {RA}")
    a.e(f"s_mul_i32 s33, s30, {BR}")
    a.e(f"s_mul_i32 s52, s33, {WROW}")
    a.e("s_lshl_b32 s34, s29, 1")
    a.e("s_add_u32 s52, s52, s34")
    a.e(f"s_mul_i32 s53, s33, {RB}")
    a.e(f"s_add_u32 s53, s53, {ASZ}")
    def dma_items(c):
        sl = c % NSLOT
        out = []
        for q in range(4):
            rows = 1024 // RA
            p = (q & 1) if RA == 128 else q
            out.append([f"s_add_u32 s34, s50, 0x{q*rows*AROW + c*RA:x}",
                        f"s_add_u32 m0, s51, 0x{sl*SLOTB + q*1024:x}",
                        "s_nop 0",
                        f"buffer_load_dwordx4 v{VA+p}, s[12:15], s34 offen lds"])
        for q in range(4):
            rows = 1024 // RB
            p = (q >> 1) if RB == 256 else (q & 1)
            out.append([f"s_add_u32 s34, s52, 0x{(c*KC + q*rows)*WROW:x}",
                        f"s_add_u32 m0, s53, 0x{sl*SLOTB + q*1024:x}",
                        "s_nop 0",
                        f"buffer_load_dwordx4 v{VB+p}, s[16:19], s34 offen lds"])
        return out
    a.e("s_cmp_eq_u32 s55, 0")
    a.e(f"s_cbranch_scc1 L_{name}_comp")
    for c in range(2):
        for it in dma_items(c):
            for l in it:
                a.e(l)
    lissued = 1
    for c in range(NST):
        a.e(f"s_waitcnt vmcnt({min(63,(lissued-c)*8)})")
        a.e("s_barrier")
        lim = NSLOT - 1 if c == 0 else c - 1 + NSLOT
        while lissued + 1 < NST and lissued + 1 <= lim:
            lissued += 1
            for it in dma_items(lissued):
                for l in it:
                    a.e(l)
    a.e("s_endpgm")
    a.lab(f"L_{name}_comp")
    RES, BIAS = 96, 112
    if not LN:
        a.e("s_lshl_b32 s34, s31, 5")
        a.e("s_add_u32 s34, s34, s28")
        a.e("v_add_u32 v12, s34, v2")
        a.e("v_lshlrev_b32 v12, 10, v12")
        a.e("v_lshl_add_u32 v12, v3, 3, v12")
        a.e("s_lshl_b32 s54, s29, 1")
        a.e("s_lshl_b32 s34, s32, 6")
        a.e("s_add_u32 s54, s54, s34")
        a.e("v_add_u32 v13, 0x4000, v12")
        for t in range(2):
            for j in range(2):
                a.e(f"buffer_load_dwordx2 {vr(RES+(t*2+j)*2,2)}, v{12+t}, s[24:27], s54 offen offset:{32*j}")
        if mode == "ffn2":
            a.e("v_lshlrev_b32 v28, 3, v3")
            for j in range(2):
                a.e(f"buffer_load_dwordx2 {vr(BIAS+2*j,2)}, v28, s[44:47], s54 offen offset:{32*j}")

    if mode == "ffn1":
        a.e("v_lshlrev_b32 v28, 3, v3")
        a.e("s_lshl_b32 s34, s29, 1")
        a.e("s_lshl_b32 s35, s32, 7")
        a.e("s_add_u32 s34, s34, s35")
        a.e("s_lshl_b32 s35, s31, 6")
        a.e("s_add_u32 s36, s34, s35")
        a.e("s_sub_u32 s37, s34, s35")
        for jj in range(4):
            a.e(f"buffer_load_dwordx2 {vr(BIAS+2*jj,2)}, v28, s[44:47], s{36 if jj<2 else 37} offen offset:{32*jj}")
    VX, VW = 14, 22
    a.e(f"s_mul_i32 s34, s31, {WM}")
    a.e("v_add_u32 v28, s34, v2")
    a.e(f"v_lshlrev_b32 v28, {7 if RA==128 else 8}, v28")
    if RA == 128:
        a.e("v_lshrrev_b32 v29, 1, v2")
        a.e("v_xor_b32 v29, v29, v3")
    else:
        a.e("v_xor_b32 v29, v2, v3")
    nx = 0
    XR = {}
    if LN:
        a.e(f"s_lshl_b32 s35, s32, {1 + 4 + 7}")
    for ks in range(KS):
        a.e(f"v_xor_b32 v30, {4*ks}, v29")
        a.e(f"v_lshl_add_u32 v30, v30, 4, v28")
        if LN:
            a.e(f"v_add_u32 v{VX+nx}, s35, v30"); XR[(ks, 0)] = VX + nx; nx += 1
            a.e(f"v_subrev_u32 v{VX+nx}, s35, v30"); XR[(ks, 1)] = VX + nx; nx += 1
        else:
            a.e(f"v_mov_b32 v{VX+nx}, v30"); XR[(ks, 0)] = VX + nx; XR[(ks, 1)] = VX + nx; nx += 1
    a.e("v_bfe_u32 v28, v0, 2, 2")
    a.e("v_lshl_add_u32 v29, v3, 3, v28")
    a.e(f"v_lshlrev_b32 v29, {8 if RB==256 else 7}, v29")
    a.e("v_and_b32 v30, 3, v0")
    a.e("v_lshl_add_u32 v29, v30, 3, v29")
    a.e(f"v_add_u32 v29, {ASZ}, v29")
    a.e("v_and_b32 v30, 1, v3")
    if RB == 256:
        a.e("v_lshl_add_u32 v28, v30, 2, v28")
    else:
        a.e("v_lshrrev_b32 v28, 1, v28")
        a.e("v_lshl_add_u32 v28, v30, 1, v28")
    for jj in range(NT):
        a.e(f"s_mul_i32 s34, s32, {NT}")
        if LN:
            a.e("s_lshl_b32 s35, s31, 1")
            a.e(f"s_xor_b32 s35, s35, {jj}")
            a.e("s_add_u32 s34, s34, s35")
        else:
            a.e(f"s_add_u32 s34, s34, {jj}")
        a.e("v_xor_b32 v30, s34, v28")
        a.e(f"v_lshl_add_u32 v{VW+jj}, v30, 5, v29")
    addr_regs = sorted(set(XR.values())) + [VW + jj for jj in range(NT)]
    if mode == "ffn1":
        for jj in range(4):
            a.e(f"buffer_load_dwordx2 {vr(BIAS+2*jj,2)}, v28, s[44:47], s{36 if jj<2 else 37} offen offset:{32*jj}") if False else None
    if LN:
        for k in range(4):
            a.e(f"v_mov_b32 v{120+k}, 0x3f803f80")
    XF, WF = 32, 64
    def xf(b, t): return XF + b * 16 + t * 4
    def wf(b, j): return WF + b * 16 + j * 4
    AC = 128
    def acc(t, j):
        n = (t * NT + j) * 4
        return vr(AC + n, 4)
    state = {"sub": 0}
    def frag_reads(s):
        c, ks, b = s // KS, s % KS, s & 1
        sl = c % NSLOT
        out = []
        want = (sl // 2) * 65536
        if want != state["sub"]:
            d = want - state["sub"]
            for r in addr_regs:
                out.append(f"v_add_u32 v{r}, 0x{d & 0xffffffff:x}, v{r}")
            state["sub"] = want
        base = sl * SLOTB - state["sub"]
        for t in range(MT):
            out.append(f"ds_read_b128 {vr(xf(b,t),4)}, v{XR[(ks, 1 if t >= 2 else 0)]} offset:{base + t*16*RA}")
        for j in range(NT):
            for aa in range(2):
                out.append(f"ds_read_b64_tr_b16 {vr(wf(b,j)+2*aa,2)}, v{VW+j} offset:{base + (32*ks+4*aa)*RB}")
        return out
    NSTEP = NST * KS
    stamp(a, 1)
    a.e("s_barrier")
    stamp(a, 2)
    for r in frag_reads(0):
        a.e(r)
    for s in range(NSTEP):
        c, ks, b = s // KS, s % KS, s & 1
        a.e("s_waitcnt lgkmcnt(0)")
        fill = []
        dm = []
        if s + 1 < NSTEP:
            if (s + 1) % KS == 0:
                a.e("s_barrier")
            fill = [[l] for l in frag_reads(s + 1)]
        fill += dm
        mf = []
        for j in range(NT):
            for t in range(MT):
                cc = "0" if s == 0 else acc(t, j)
                mf.append(f"v_mfma_f32_16x16x32_bf16 {acc(t,j)}, {vr(wf(b,j),4)}, {vr(xf(b,t),4)}, {cc}")
        if LN:
            for tt in range(2):
                d = vr(AC + 64 + 4 * tt, 4); cc = "0" if s == 0 else d
                mf.append(f"v_mfma_f32_16x16x32_bf16 {d}, v[120:123], {vr(xf(b,tt),4)}, {cc}")
                d = vr(AC + 72 + 4 * tt, 4); cc = "0" if s == 0 else d
                mf.append(f"v_mfma_f32_16x16x32_bf16 {d}, {vr(xf(b,tt),4)}, {vr(xf(b,tt),4)}, {cc}")
                d = vr(AC + 80 + 4 * tt, 4); cc = "0" if s == 0 else d
                mf.append(f"v_mfma_f32_16x16x32_bf16 {d}, {vr(wf(b,tt),4)}, v[120:123], {cc}")
        per = -(-len(fill) // (len(mf) * 3 // 4)) if fill else 0
        for m in mf:
            a.e(m)
            for _ in range(per):
                if fill:
                    for l in fill.pop(0):
                        a.e(l)
        while fill:
            for l in fill.pop(0):
                a.e(l)
    stamp(a, 3)
    a.nop(8)
    T = 32
    if not LN:
        a.e("s_waitcnt vmcnt(0)")
        for t in range(2):
            for j in range(2):
                R = RES + (t * 2 + j) * 2
                a.e(f"v_lshlrev_b32 v{T}, 16, v{R}")
                a.e(f"v_and_b32 v{T+1}, 0xffff0000, v{R}")
                a.e(f"v_lshlrev_b32 v{T+2}, 16, v{R+1}")
                a.e(f"v_and_b32 v{T+3}, 0xffff0000, v{R+1}")
                for k in range(4):
                    a.e(f"v_add_f32 v{T+8+k}, v{AC+(t*NT+j)*4+k}, v{T+k}")
                if mode == "ffn2":
                    a.e(f"v_lshlrev_b32 v{T}, 16, v{BIAS+2*j}")
                    a.e(f"v_and_b32 v{T+1}, 0xffff0000, v{BIAS+2*j}")
                    a.e(f"v_lshlrev_b32 v{T+2}, 16, v{BIAS+2*j+1}")
                    a.e(f"v_and_b32 v{T+3}, 0xffff0000, v{BIAS+2*j+1}")
                    for k in range(4):
                        a.e(f"v_add_f32 v{T+8+k}, v{T+8+k}, v{T+k}")
                o = T + 16 + (t * 2 + j) * 2
                a.e(f"v_cvt_pk_bf16_f32 v{o}, v{T+8}, v{T+9}")
                a.e(f"v_cvt_pk_bf16_f32 v{o+1}, v{T+10}, v{T+11}")
                a.e(f"buffer_store_dwordx2 {vr(o,2)}, v{12+t}, s[20:23], s54 offen offset:{32*j}")
    else:
        a.e("v_and_b32 v28, 3, v2")
        a.e("v_lshrrev_b32 v29, 2, v2")
        for tt in range(2):
            a.e(f"v_mov_b32 v{120+2*tt}, v{AC+64+4*tt}")
            a.e(f"v_mov_b32 v{121+2*tt}, v{AC+72+4*tt}")
            for k in range(1, 4):
                a.e(f"v_cmp_eq_u32 vcc, {k}, v28")
                a.nop(2)
                a.e(f"v_cndmask_b32 v{121+2*tt}, v{121+2*tt}, v{AC+72+4*tt+k}, vcc")
            a.e("v_cmp_eq_u32 vcc, v29, v3")
            a.e(f"v_mov_b32 v{T+20}, 0")
            a.nop(2)
            a.e(f"v_cndmask_b32 v{121+2*tt}, v{T+20}, v{121+2*tt}, vcc")
            xreduce_add(a, 121 + 2 * tt, 30, 31)
        a.e("s_lshl_b32 s34, s31, 6")
        a.e("s_lshl_b32 s35, s32, 5")
        a.e("s_add_u32 s34, s34, s35")
        a.e("v_add_u32 v28, s34, v2")
        a.e("v_lshlrev_b32 v28, 3, v28")
        a.e(f"v_add_u32 v28, 0x{EXS:x}, v28")
        for tt in range(2):
            a.e(f"v_mul_f32 v{T+2*tt}, {f32(1/512)}, v{120+2*tt}")
            a.e(f"v_mul_f32 v30, {f32(1/512)}, v{121+2*tt}")
            a.e(f"v_fma_f32 v30, -v{T+2*tt}, v{T+2*tt}, v30")
            a.e("v_max_f32 v30, 0, v30")
            a.e(f"v_add_f32 v30, {f32(1e-5)}, v30")
            a.e(f"v_rsq_f32 v{T+2*tt+1}, v30")
            a.nop(1)
            a.e(f"ds_write_b64 v28, {vr(T+2*tt,2)} offset:{tt*128}")
        a.e("s_lshl_b32 s34, s32, 8")
        a.e("s_lshl_b32 s35, s31, 7")
        a.e("s_add_u32 s34, s34, s35")
        a.e("v_lshlrev_b32 v29, 4, v3")
        a.e("v_add_u32 v29, s34, v29")
        a.e(f"v_add_u32 v29, 0x{EXC:x}, v29")
        for jj in range(2):
            a.e(f"ds_write_b128 v29, {vr(AC+80+4*jj,4)} offset:{jj*64}")
        a.e("s_waitcnt lgkmcnt(0)")
        a.e("s_barrier")
        stamp(a, 4)
        a.e("s_lshl_b32 s34, s31, 6")
        a.e("v_add_u32 v28, s34, v2")
        a.e("v_lshlrev_b32 v28, 3, v28")
        a.e(f"v_add_u32 v28, 0x{EXS:x}, v28")
        a.e("s_lshl_b32 s35, s32, 8")
        a.e("v_add_u32 v30, s35, v28")
        a.e("v_subrev_u32 v31, s35, v28")
        ST = 96
        for tt in range(4):
            a.e(f"ds_read_b64 {vr(ST+2*tt,2)}, v{30 if tt<2 else 31} offset:{tt*128}")
        a.e("s_lshl_b32 s34, s32, 8")
        a.e("v_lshlrev_b32 v28, 4, v3")
        a.e("v_add_u32 v28, s34, v28")
        a.e(f"v_add_u32 v28, 0x{EXC:x}, v28")
        a.e("s_lshl_b32 s35, s31, 7")
        a.e("v_add_u32 v30, s35, v28")
        a.e("v_subrev_u32 v31, s35, v28")
        CS = 64
        for jj in range(4):
            a.e(f"ds_read_b128 {vr(CS+4*jj,4)}, v{30 if jj<2 else 31} offset:{jj*64}")
        OV = 104
        a.e("s_lshl_b32 s34, s31, 6")
        a.e("s_add_u32 s34, s34, s28")
        a.e("s_lshl_b32 s35, s32, 5")
        for tt in range(4):
            a.e(f"s_{'add' if tt<2 else 'sub'}_u32 s38, s34, s35")
            a.e(f"s_add_u32 s38, s38, {16*tt}")
            a.e("v_add_u32 v28, s38, v2")
            if mode == "qkv":
                a.e("v_lshlrev_b32 v28, 5, v28")
            else:
                a.e("v_subrev_u32 v28, s34, v28")
                a.e("v_mul_u32_u24 v28, 144, v28")
            a.e(f"v_lshl_add_u32 v{OV+tt}, v3, 3, v28")
        a.e("s_waitcnt vmcnt(0) lgkmcnt(0)")
        if mode == "ffn1":
            c0 = -2 * math.log2(math.e) * 0.7978845608028654
            a.e(f"s_mov_b32 s40, {f32(c0*0.044715)}")
            a.e(f"s_mov_b32 s41, {f32(c0*0.044715)}")
            a.e(f"v_mov_b32 v108, {f32(c0)}")
            a.e(f"v_mov_b32 v109, {f32(c0)}")
            a.e("v_mov_b32 v110, 1.0")
            a.e("v_mov_b32 v111, 1.0")
        for jj in range(4):
            a.e("s_lshl_b32 s34, s31, 1")
            a.e(f"s_xor_b32 s34, s34, {jj}")
            a.e("s_lshl_b32 s34, s34, 4")
            a.e("s_lshl_b32 s35, s32, 6")
            a.e("s_add_u32 s34, s34, s35")
            a.e("s_add_u32 s34, s34, s29")
            if mode == "qkv":
                a.e("s_lshr_b32 s35, s34, 9")
                a.e("s_bfe_u32 s36, s34, 0x50004")
                a.e("s_lshl_b32 s37, s35, 21")
                a.e("s_lshl_b32 s36, s36, 16")
                a.e("s_add_u32 s37, s37, s36")
                a.e("s_cmp_eq_u32 s35, 0")
                a.e(f"s_cselect_b32 s39, {f32(QSCALE)}, 1.0")
            else:
                a.e(f"s_mul_i32 s57, s30, {64*144}")
                a.e("s_lshl_b32 s56, s31, 1")
                a.e(f"s_xor_b32 s56, s56, {jj}")
                a.e("s_lshl_b32 s56, s56, 5")
                a.e("s_add_u32 s56, s56, s57")
                BU = T + 16
                a.e(f"v_lshlrev_b32 v{BU}, 16, v{BIAS+2*jj}")
                a.e(f"v_and_b32 v{BU+1}, 0xffff0000, v{BIAS+2*jj}")
                a.e(f"v_lshlrev_b32 v{BU+2}, 16, v{BIAS+2*jj+1}")
                a.e(f"v_and_b32 v{BU+3}, 0xffff0000, v{BIAS+2*jj+1}")
            def A0(tt): return AC + (tt * NT + jj) * 4
            def st(tt): return vr(ST + 2 * tt, 2)
            TP = [(tt, p) for tt in range(4) for p in range(2)]
            if mode == "qkv":
                for tt in range(4):
                    a.e(f"v_mul_f32 v{T+2*tt}, s39, v{ST+2*tt+1}")
            for tt, p in TP:
                a.e(f"v_pk_fma_f32 {vr(A0(tt)+2*p,2)}, {vr(CS+4*jj+2*p,2)}, {st(tt)}, {vr(A0(tt)+2*p,2)} op_sel_hi:[1,0,1] neg_lo:[0,1,0] neg_hi:[0,1,0]")
            if mode == "qkv":
                for tt, p in TP:
                    a.e(f"v_pk_mul_f32 {vr(A0(tt)+2*p,2)}, {vr(A0(tt)+2*p,2)}, {vr(T+2*tt,2)} op_sel_hi:[1,0]")
            else:
                def tm(tt, p): return T + 4 * tt + 2 * p
                for tt, p in TP:
                    a.e(f"v_pk_fma_f32 {vr(A0(tt)+2*p,2)}, {vr(A0(tt)+2*p,2)}, {st(tt)}, {vr(BU+2*p,2)} op_sel:[0,1,0] op_sel_hi:[1,1,1]")
                for tt, p in TP:
                    a.e(f"v_pk_mul_f32 {vr(tm(tt,p),2)}, {vr(A0(tt)+2*p,2)}, {vr(A0(tt)+2*p,2)}")
                for tt, p in TP:
                    a.e(f"v_pk_fma_f32 {vr(tm(tt,p),2)}, {vr(tm(tt,p),2)}, s[40:41], v[108:109]")
                for tt, p in TP:
                    a.e(f"v_pk_mul_f32 {vr(tm(tt,p),2)}, {vr(tm(tt,p),2)}, {vr(A0(tt)+2*p,2)}")
                for k in range(16):
                    a.e(f"v_exp_f32 v{T+k}, v{T+k}")
                for tt, p in TP:
                    a.e(f"v_pk_add_f32 {vr(tm(tt,p),2)}, {vr(tm(tt,p),2)}, v[110:111]")
                for k in range(16):
                    a.e(f"v_rcp_f32 v{T+k}, v{T+k}")
                for tt, p in TP:
                    a.e(f"v_pk_mul_f32 {vr(A0(tt)+2*p,2)}, {vr(A0(tt)+2*p,2)}, {vr(tm(tt,p),2)}")
            for tt in range(4):
                o = T + 20 + 2 * tt
                a.e(f"v_cvt_pk_bf16_f32 v{o}, v{A0(tt)}, v{A0(tt)+1}")
                a.e(f"v_cvt_pk_bf16_f32 v{o+1}, v{A0(tt)+2}, v{A0(tt)+3}")
                if mode != "qkv":
                    a.e(f"v_add_u32 v{T+28+tt}, s56, v{OV+tt}")
            for tt in range(4):
                o = T + 20 + 2 * tt
                if mode == "qkv":
                    a.e(f"buffer_store_dwordx2 {vr(o,2)}, v{OV+tt}, s[20:23], s37 offen sc1")
                else:
                    a.e(f"ds_write_b64 v{T+28+tt}, {vr(o,2)}")
        if mode == "ffn1":
            a.e("v_lshrrev_b32 v28, 3, v1")
            a.e("v_and_b32 v29, 7, v1")
            a.e("v_mul_u32_u24 v30, 144, v28")
            a.e("v_lshl_add_u32 v30, v29, 4, v30")
            a.e("v_add_u32 v30, s57, v30")
            a.e("s_lshl_b32 s34, s31, 6")
            a.e("s_add_u32 s34, s34, s28")
            a.e("v_add_u32 v28, s34, v28")
            a.e("v_mul_u32_u24 v28, 0xe00, v28")
            a.e("v_lshl_add_u32 v28, v29, 4, v28")
            a.e("s_lshl_b32 s34, s29, 1")
            a.e("s_lshl_b32 s35, s32, 7")
            a.e("s_add_u32 s34, s34, s35")
            a.e("s_waitcnt lgkmcnt(0)")
            for it in range(8):
                a.e(f"ds_read_b128 {vr(AC+4*it,4)}, v30 offset:{it*8*144}")
            for it in range(8):
                a.e(f"s_waitcnt lgkmcnt({7-it})")
                a.e(f"s_add_u32 s35, s34, {it*8*3584}")
                a.e(f"buffer_store_dwordx4 {vr(AC+4*it,4)}, v28, s[20:23], s35 offen sc1")
    stamp(a, 5)
    stamp_flush(a, 6, 8, name, slot)
    a.lab(f"L_{name}_end")
    a.e("s_endpgm")
    nacc = 88 if LN else MT * NT * 4
    desc = "".join(kernel_desc(v[0], 128 + nacc, 128 + nacc) for v in variants)
    return a.L, desc, LDS, NWG
```

```python
import sys, os
import gen
from gen import *
from gemm2 import gemm2
from attn2 import attn2

def main(outpath, nlaunch=None):
    ks = []
    def add(name, block, r):
        ks.append((name, block) + tuple(r))
    d = {}
    def addg(gname, mode, variants, slot):
        r = gemm2(gname, mode, variants, slot)
        ks.append((gname, 512) + tuple(r))
        for v in variants:
            d[v[0]] = (v[0], 512) + tuple(r)
    addg("qkv", "qkv", [("qkv0_kernel", "in", None), ("qkv1_kernel", WS_X2, None)], 0)
    add("attn_kernel", 512, attn2("attn_kernel", 1))
    d["attn_kernel"] = ks[-1]
    addg("wo", "wo", [("wo0_kernel", "in", WS_X1), ("wo1_kernel", WS_X2, WS_X1)], 2)
    addg("ffn1", "ffn1", [("ffn1_kernel", WS_X1, None)], 3)
    addg("ffn2", "ffn2", [("ffn2a_kernel", WS_X1, WS_X2), ("ffn2b_kernel", WS_X1, "out")], 4)
    order = ["qkv0_kernel", "attn_kernel", "wo0_kernel", "ffn1_kernel", "ffn2a_kernel",
             "qkv1_kernel", "attn_kernel", "wo1_kernel", "ffn1_kernel", "ffn2b_kernel"]
    if nlaunch:
        order = order[:nlaunch]
    ref = open(f"cdna_kernels/{NAME}.s.ref").read().splitlines()
    head = [l for l in ref if l.startswith(";") and "@launch" not in l and "Override" not in l and "grid=ceil" not in l]
    out = list(head)
    for n in order:
        k = d[n]
        out.append(f"; @launch kernel={n} grid=({k[5]},1,1) block=({k[1]},1,1) lds={k[4]}")
    out.append('.amdgcn_target "amdgcn-amd-amdhsa--gfx950"')
    out.append(".text")
    for k in ks:
        out += k[2]
    out.append('.section .rodata,"a"')
    for k in ks:
        out.append(k[3])
    open(outpath, "w").write("\n".join(out) + "\n")

if __name__ == "__main__":
    if os.environ.get("STAMPS"):
        gen.STAMPS = True
    main(sys.argv[1] if len(sys.argv) > 1 else f"cdna_kernels/{NAME}.s",
         int(sys.argv[2]) if len(sys.argv) > 2 else None)
```

```python
from gen import *
import gen

def gemm2(name, mode, xsrc=None, res=None, dst=None, slot=0):
    a = Asm()
    LN = mode in ("qkv", "ffn1")
    if LN:
        TM = TN = 128; KC = 64; K = 512
        WROW = 3072 if mode == "qkv" else 3584
        NCB = 12 if mode == "qkv" else 14
        NWG = 16 * NCB
        AROW = 1024
    else:
        TM = TN = 64; KC = 128
        K = 512 if mode == "wo" else 1792
        WROW = 1024
        NWG = 256
        AROW = K * 2
    RA = KC * 2; RB = TN * 2
    ASZ = TM * RA; BSZ = KC * RB
    SLOTB = ASZ + BSZ
    NST = K // KC
    NSLOT = min(4, NST)
    KS = KC // 32
    WM = TM // 2; MT = WM // 16; NT = TN // 32
    EXS = NSLOT * SLOTB
    EXC = EXS + 1024
    LDS = EXS + (2048 if LN else 0)
    kernel_head(a, name)
    a.e(f"s_cmp_ge_u32 s2, {NWG}")
    a.e(f"s_cbranch_scc1 L_{name}_end")
    stamp(a, 0)
    wkey = dict(qkv="wqkv", ffn1="w1", wo="wo", ffn2="w2")[mode]
    a.e(f"s_load_dwordx2 s[6:7], s[0:1], {KA[wkey]}")
    a.e(f"s_load_dwordx2 s[8:9], s[0:1], {KA['ws']}")
    if xsrc == "in" or res == "in":
        a.e(f"s_load_dwordx2 s[4:5], s[0:1], {KA['x']}")
    if mode in ("ffn1", "ffn2"):
        a.e(f"s_load_dwordx2 s[10:11], s[0:1], {KA['b1' if mode=='ffn1' else 'b2']}")
    if dst == "out":
        a.e(f"s_load_dwordx2 s[48:49], s[0:1], {KA['out']}")
    a.e("v_and_b32 v1, 63, v0")
    a.e("v_and_b32 v2, 15, v0")
    a.e("v_bfe_u32 v3, v0, 4, 2")
    a.e("v_lshrrev_b32 v28, 6, v0")
    a.nop(1)
    a.e("v_readfirstlane_b32 s30, v28")
    a.e("s_and_b32 s34, s2, 7")
    a.e("s_lshr_b32 s35, s2, 3")
    a.e("s_lshr_b32 s55, s30, 2")
    a.e("s_and_b32 s30, s30, 3")
    if LN:
        half = NCB // 2
        mg = 43 if half == 6 else 37
        a.e(f"s_mul_i32 s36, s35, {mg}")
        a.e("s_lshr_b32 s36, s36, 8")
        a.e(f"s_mul_i32 s37, s36, {half}")
        a.e("s_sub_u32 s37, s35, s37")
        a.e("s_lshr_b32 s38, s34, 1")
        a.e("s_lshl_b32 s38, s38, 2")
        a.e("s_add_u32 s38, s38, s36")
        a.e("s_and_b32 s39, s34, 1")
        a.e(f"s_mul_i32 s39, s39, {half}")
        a.e("s_add_u32 s39, s39, s37")
        a.e("s_lshl_b32 s28, s38, 7")
        a.e("s_lshl_b32 s29, s39, 7")
    else:
        a.e("s_lshr_b32 s36, s35, 3")
        a.e("s_lshl_b32 s34, s34, 2")
        a.e("s_add_u32 s34, s34, s36")
        a.e("s_and_b32 s35, s35, 7")
        a.e("s_lshl_b32 s28, s34, 6")
        a.e("s_lshl_b32 s29, s35, 6")
    a.e("s_lshr_b32 s31, s30, 1")
    a.e("s_and_b32 s32, s30, 1")
    a.e("s_waitcnt lgkmcnt(0)")
    if LN:
        if xsrc == "in":
            srd(a, 12, 4, 2 * MB)
        else:
            srd(a, 12, 8, 2 * MB, xsrc)
    else:
        srd(a, 12, 8, 2048 * AROW, WS_O if mode == "wo" else WS_H)
    srd(a, 16, 6, K * WROW)
    if mode == "qkv":
        srd(a, 20, 8, 6 * MB)
    elif mode == "ffn1":
        srd(a, 20, 8, 2048 * 3584, WS_H)
    elif dst == "out":
        srd(a, 20, 48, 2 * MB)
    else:
        srd(a, 20, 8, 2 * MB, dst)
    if not LN:
        if res == "in":
            srd(a, 24, 4, 2 * MB)
        else:
            srd(a, 24, 8, 2 * MB, res)
    if mode == "ffn1":
        srd(a, 44, 10, 1792 * 2)
    if mode == "ffn2":
        srd(a, 44, 10, 1024)
    VA, VB = 4, 8
    if RA == 128:
        NPA = 2
        a.e("v_lshrrev_b32 v28, 3, v1")
        a.e("v_and_b32 v29, 7, v1")
        a.e("v_lshrrev_b32 v30, 1, v28")
        a.e("v_xor_b32 v29, v29, v30")
        a.e(f"v_mul_u32_u24 v28, 0x{AROW:x}, v28")
        a.e(f"v_lshl_add_u32 v{VA}, v29, 4, v28")
        a.e("v_xor_b32 v29, 4, v29")
        a.e(f"v_lshl_add_u32 v{VA+1}, v29, 4, v28")
    else:
        NPA = 4
        a.e("v_xor_b32 v29, v2, v3")
        a.e(f"v_mul_u32_u24 v28, 0x{AROW:x}, v3")
        for p in range(4):
            a.e(f"v_xor_b32 v30, {4*p}, v29")
            a.e(f"v_lshl_add_u32 v{VA+p}, v30, 4, v28")
    if RB == 256:
        a.e("v_lshrrev_b32 v29, 1, v2")
        a.e("v_xor_b32 v29, v29, v3")
        a.e("v_and_b32 v30, 1, v2")
        a.e("v_lshl_add_u32 v29, v29, 1, v30")
        a.e(f"v_mul_u32_u24 v28, 0x{WROW:x}, v3")
        a.e(f"v_lshl_add_u32 v{VB}, v29, 4, v28")
        a.e("v_xor_b32 v29, 8, v29")
        a.e(f"v_lshl_add_u32 v{VB+1}, v29, 4, v28")
    else:
        a.e("v_lshrrev_b32 v28, 3, v1")
        a.e("v_bfe_u32 v29, v1, 4, 1")
        a.e("v_bfe_u32 v30, v1, 1, 2")
        a.e("v_xor_b32 v30, v30, v29")
        a.e("v_and_b32 v31, 1, v1")
        a.e("v_lshl_add_u32 v31, v30, 1, v31")
        a.e(f"v_mul_u32_u24 v28, 0x{WROW:x}, v28")
        a.e(f"v_lshl_add_u32 v{VB}, v31, 4, v28")
        a.e("v_xor_b32 v31, 4, v31")
        a.e(f"v_lshl_add_u32 v{VB+1}, v31, 4, v28")
    AR = TM // 4; BR = KC // 4
    a.e(f"s_mul_i32 s33, s30, {AR}")
    a.e("s_add_u32 s34, s28, s33")
    a.e(f"s_mul_i32 s50, s34, {AROW}")
    a.e(f"s_mul_i32 s51, s33, {RA}")
    a.e(f"s_mul_i32 s33, s30, {BR}")
    a.e(f"s_mul_i32 s52, s33, {WROW}")
    a.e("s_lshl_b32 s34, s29, 1")
    a.e("s_add_u32 s52, s52, s34")
    a.e(f"s_mul_i32 s53, s33, {RB}")
    a.e(f"s_add_u32 s53, s53, {ASZ}")
    def dma_items(c):
        sl = c % NSLOT
        out = []
        for q in range(4):
            rows = 1024 // RA
            p = (q & 1) if RA == 128 else q
            out.append([f"s_add_u32 s34, s50, 0x{q*rows*AROW + c*RA:x}",
                        f"s_add_u32 m0, s51, 0x{sl*SLOTB + q*1024:x}",
                        "s_nop 0",
                        f"buffer_load_dwordx4 v{VA+p}, s[12:15], s34 offen lds"])
        for q in range(4):
            rows = 1024 // RB
            p = (q >> 1) if RB == 256 else (q & 1)
            out.append([f"s_add_u32 s34, s52, 0x{(c*KC + q*rows)*WROW:x}",
                        f"s_add_u32 m0, s53, 0x{sl*SLOTB + q*1024:x}",
                        "s_nop 0",
                        f"buffer_load_dwordx4 v{VB+p}, s[16:19], s34 offen lds"])
        return out
    a.e("s_cmp_eq_u32 s55, 0")
    a.e(f"s_cbranch_scc1 L_{name}_comp")
    a.e("s_setprio 3")
    for c in range(2):
        for it in dma_items(c):
            for l in it:
                a.e(l)
    lissued = 1
    for c in range(NST):
        a.e(f"s_waitcnt vmcnt({min(63,(lissued-c)*8)})")
        a.e("s_barrier")
        lim = NSLOT - 1 if c == 0 else c - 1 + NSLOT
        while lissued + 1 < NST and lissued + 1 <= lim:
            lissued += 1
            for it in dma_items(lissued):
                for l in it:
                    a.e(l)
    a.e("s_endpgm")
    a.lab(f"L_{name}_comp")
    RES, BIAS = 96, 112
    if not LN:
        a.e("s_lshl_b32 s34, s31, 5")
        a.e("s_add_u32 s34, s34, s28")
        a.e("v_add_u32 v12, s34, v2")
        a.e("v_lshlrev_b32 v12, 10, v12")
        a.e("v_lshl_add_u32 v12, v3, 3, v12")
        a.e("s_lshl_b32 s54, s29, 1")
        a.e("s_lshl_b32 s34, s32, 6")
        a.e("s_add_u32 s54, s54, s34")
        a.e("v_add_u32 v13, 0x4000, v12")
        for t in range(2):
            for j in range(2):
                a.e(f"buffer_load_dwordx2 {vr(RES+(t*2+j)*2,2)}, v{12+t}, s[24:27], s54 offen offset:{32*j}")
        if mode == "ffn2":
            a.e("v_lshlrev_b32 v28, 3, v3")
            for j in range(2):
                a.e(f"buffer_load_dwordx2 {vr(BIAS+2*j,2)}, v28, s[44:47], s54 offen offset:{32*j}")

    if mode == "ffn1":
        a.e("v_lshlrev_b32 v28, 3, v3")
        a.e("s_lshl_b32 s34, s29, 1")
        a.e("s_lshl_b32 s35, s32, 7")
        a.e("s_add_u32 s34, s34, s35")
        a.e("s_lshl_b32 s35, s31, 6")
        a.e("s_add_u32 s36, s34, s35")
        a.e("s_sub_u32 s37, s34, s35")
        for jj in range(4):
            a.e(f"buffer_load_dwordx2 {vr(BIAS+2*jj,2)}, v28, s[44:47], s{36 if jj<2 else 37} offen offset:{32*jj}")
    VX, VW = 14, 22
    a.e(f"s_mul_i32 s34, s31, {WM}")
    a.e("v_add_u32 v28, s34, v2")
    a.e(f"v_lshlrev_b32 v28, {7 if RA==128 else 8}, v28")
    if RA == 128:
        a.e("v_lshrrev_b32 v29, 1, v2")
        a.e("v_xor_b32 v29, v29, v3")
    else:
        a.e("v_xor_b32 v29, v2, v3")
    nx = 0
    XR = {}
    if LN:
        a.e(f"s_lshl_b32 s35, s32, {1 + 4 + 7}")
    for ks in range(KS):
        a.e(f"v_xor_b32 v30, {4*ks}, v29")
        a.e(f"v_lshl_add_u32 v30, v30, 4, v28")
        if LN:
            a.e(f"v_add_u32 v{VX+nx}, s35, v30"); XR[(ks, 0)] = VX + nx; nx += 1
            a.e(f"v_subrev_u32 v{VX+nx}, s35, v30"); XR[(ks, 1)] = VX + nx; nx += 1
        else:
            a.e(f"v_mov_b32 v{VX+nx}, v30"); XR[(ks, 0)] = VX + nx; XR[(ks, 1)] = VX + nx; nx += 1
    a.e("v_bfe_u32 v28, v0, 2, 2")
    a.e("v_lshl_add_u32 v29, v3, 3, v28")
    a.e(f"v_lshlrev_b32 v29, {8 if RB==256 else 7}, v29")
    a.e("v_and_b32 v30, 3, v0")
    a.e("v_lshl_add_u32 v29, v30, 3, v29")
    a.e(f"v_add_u32 v29, {ASZ}, v29")
    a.e("v_and_b32 v30, 1, v3")
    if RB == 256:
        a.e("v_lshl_add_u32 v28, v30, 2, v28")
    else:
        a.e("v_lshrrev_b32 v28, 1, v28")
        a.e("v_lshl_add_u32 v28, v30, 1, v28")
    for jj in range(NT):
        a.e(f"s_mul_i32 s34, s32, {NT}")
        if LN:
            a.e("s_lshl_b32 s35, s31, 1")
            a.e(f"s_xor_b32 s35, s35, {jj}")
            a.e("s_add_u32 s34, s34, s35")
        else:
            a.e(f"s_add_u32 s34, s34, {jj}")
        a.e("v_xor_b32 v30, s34, v28")
        a.e(f"v_lshl_add_u32 v{VW+jj}, v30, 5, v29")
    addr_regs = sorted(set(XR.values())) + [VW + jj for jj in range(NT)]
    if mode == "ffn1":
        for jj in range(4):
            a.e(f"buffer_load_dwordx2 {vr(BIAS+2*jj,2)}, v28, s[44:47], s{36 if jj<2 else 37} offen offset:{32*jj}") if False else None
    if LN:
        for k in range(4):
            a.e(f"v_mov_b32 v{120+k}, 0x3f803f80")
    XF, WF = 32, 64
    def xf(b, t): return XF + b * 16 + t * 4
    def wf(b, j): return WF + b * 16 + j * 4
    AC = 128
    def acc(t, j):
        n = (t * NT + j) * 4
        return vr(AC + n, 4)
    state = {"sub": 0}
    def frag_reads(s):
        c, ks, b = s // KS, s % KS, s & 1
        sl = c % NSLOT
        out = []
        want = (sl // 2) * 65536
        if want != state["sub"]:
            d = want - state["sub"]
            for r in addr_regs:
                out.append(f"v_add_u32 v{r}, 0x{d & 0xffffffff:x}, v{r}")
            state["sub"] = want
        base = sl * SLOTB - state["sub"]
        for t in range(MT):
            out.append(f"ds_read_b128 {vr(xf(b,t),4)}, v{XR[(ks, 1 if t >= 2 else 0)]} offset:{base + t*16*RA}")
        for j in range(NT):
            for aa in range(2):
                out.append(f"ds_read_b64_tr_b16 {vr(wf(b,j)+2*aa,2)}, v{VW+j} offset:{base + (32*ks+4*aa)*RB}")
        return out
    NSTEP = NST * KS
    stamp(a, 1)
    a.e("s_barrier")
    stamp(a, 2)
    for r in frag_reads(0):
        a.e(r)
    for s in range(NSTEP):
        c, ks, b = s // KS, s % KS, s & 1
        a.e("s_waitcnt lgkmcnt(0)")
        fill = []
        dm = []
        if s + 1 < NSTEP:
            if (s + 1) % KS == 0:
                a.e("s_barrier")
            fill = [[l] for l in frag_reads(s + 1)]
        fill += dm
        mf = []
        for j in range(NT):
            for t in range(MT):
                cc = "0" if s == 0 else acc(t, j)
                mf.append(f"v_mfma_f32_16x16x32_bf16 {acc(t,j)}, {vr(wf(b,j),4)}, {vr(xf(b,t),4)}, {cc}")
        if LN:
            for tt in range(2):
                d = vr(AC + 64 + 4 * tt, 4); cc = "0" if s == 0 else d
                mf.append(f"v_mfma_f32_16x16x32_bf16 {d}, v[120:123], {vr(xf(b,tt),4)}, {cc}")
                d = vr(AC + 72 + 4 * tt, 4); cc = "0" if s == 0 else d
                mf.append(f"v_mfma_f32_16x16x32_bf16 {d}, {vr(xf(b,tt),4)}, {vr(xf(b,tt),4)}, {cc}")
                d = vr(AC + 80 + 4 * tt, 4); cc = "0" if s == 0 else d
                mf.append(f"v_mfma_f32_16x16x32_bf16 {d}, {vr(wf(b,tt),4)}, v[120:123], {cc}")
        per = -(-len(fill) // (len(mf) * 3 // 4)) if fill else 0
        for m in mf:
            a.e(m)
            for _ in range(per):
                if fill:
                    for l in fill.pop(0):
                        a.e(l)
        while fill:
            for l in fill.pop(0):
                a.e(l)
    stamp(a, 3)
    a.nop(8)
    T = 32
    if not LN:
        a.e("s_waitcnt vmcnt(0)")
        for t in range(2):
            for j in range(2):
                R = RES + (t * 2 + j) * 2
                a.e(f"v_lshlrev_b32 v{T}, 16, v{R}")
                a.e(f"v_and_b32 v{T+1}, 0xffff0000, v{R}")
                a.e(f"v_lshlrev_b32 v{T+2}, 16, v{R+1}")
                a.e(f"v_and_b32 v{T+3}, 0xffff0000, v{R+1}")
                for k in range(4):
                    a.e(f"v_add_f32 v{T+8+k}, v{AC+(t*NT+j)*4+k}, v{T+k}")
                if mode == "ffn2":
                    a.e(f"v_lshlrev_b32 v{T}, 16, v{BIAS+2*j}")
                    a.e(f"v_and_b32 v{T+1}, 0xffff0000, v{BIAS+2*j}")
                    a.e(f"v_lshlrev_b32 v{T+2}, 16, v{BIAS+2*j+1}")
                    a.e(f"v_and_b32 v{T+3}, 0xffff0000, v{BIAS+2*j+1}")
                    for k in range(4):
                        a.e(f"v_add_f32 v{T+8+k}, v{T+8+k}, v{T+k}")
                o = T + 16 + (t * 2 + j) * 2
                a.e(f"v_cvt_pk_bf16_f32 v{o}, v{T+8}, v{T+9}")
                a.e(f"v_cvt_pk_bf16_f32 v{o+1}, v{T+10}, v{T+11}")
                a.e(f"buffer_store_dwordx2 {vr(o,2)}, v{12+t}, s[20:23], s54 offen offset:{32*j}")
    else:
        a.e("v_and_b32 v28, 3, v2")
        a.e("v_lshrrev_b32 v29, 2, v2")
        for tt in range(2):
            a.e(f"v_mov_b32 v{120+2*tt}, v{AC+64+4*tt}")
            a.e(f"v_mov_b32 v{121+2*tt}, v{AC+72+4*tt}")
            for k in range(1, 4):
                a.e(f"v_cmp_eq_u32 vcc, {k}, v28")
                a.nop(2)
                a.e(f"v_cndmask_b32 v{121+2*tt}, v{121+2*tt}, v{AC+72+4*tt+k}, vcc")
            a.e("v_cmp_eq_u32 vcc, v29, v3")
            a.e(f"v_mov_b32 v{T+20}, 0")
            a.nop(2)
            a.e(f"v_cndmask_b32 v{121+2*tt}, v{T+20}, v{121+2*tt}, vcc")
            xreduce_add(a, 121 + 2 * tt, 30, 31)
        a.e("s_lshl_b32 s34, s31, 6")
        a.e("s_lshl_b32 s35, s32, 5")
        a.e("s_add_u32 s34, s34, s35")
        a.e("v_add_u32 v28, s34, v2")
        a.e("v_lshlrev_b32 v28, 3, v28")
        a.e(f"v_add_u32 v28, 0x{EXS:x}, v28")
        for tt in range(2):
            a.e(f"v_mul_f32 v{T+2*tt}, {f32(1/512)}, v{120+2*tt}")
            a.e(f"v_mul_f32 v30, {f32(1/512)}, v{121+2*tt}")
            a.e(f"v_fma_f32 v30, -v{T+2*tt}, v{T+2*tt}, v30")
            a.e("v_max_f32 v30, 0, v30")
            a.e(f"v_add_f32 v30, {f32(1e-5)}, v30")
            a.e(f"v_rsq_f32 v{T+2*tt+1}, v30")
            a.nop(1)
            a.e(f"ds_write_b64 v28, {vr(T+2*tt,2)} offset:{tt*128}")
        a.e("s_lshl_b32 s34, s32, 8")
        a.e("s_lshl_b32 s35, s31, 7")
        a.e("s_add_u32 s34, s34, s35")
        a.e("v_lshlrev_b32 v29, 4, v3")
        a.e("v_add_u32 v29, s34, v29")
        a.e(f"v_add_u32 v29, 0x{EXC:x}, v29")
        for jj in range(2):
            a.e(f"ds_write_b128 v29, {vr(AC+80+4*jj,4)} offset:{jj*64}")
        a.e("s_waitcnt lgkmcnt(0)")
        a.e("s_barrier")
        stamp(a, 4)
        a.e("s_lshl_b32 s34, s31, 6")
        a.e("v_add_u32 v28, s34, v2")
        a.e("v_lshlrev_b32 v28, 3, v28")
        a.e(f"v_add_u32 v28, 0x{EXS:x}, v28")
        a.e("s_lshl_b32 s35, s32, 8")
        a.e("v_add_u32 v30, s35, v28")
        a.e("v_subrev_u32 v31, s35, v28")
        ST = 96
        for tt in range(4):
            a.e(f"ds_read_b64 {vr(ST+2*tt,2)}, v{30 if tt<2 else 31} offset:{tt*128}")
        a.e("s_lshl_b32 s34, s32, 8")
        a.e("v_lshlrev_b32 v28, 4, v3")
        a.e("v_add_u32 v28, s34, v28")
        a.e(f"v_add_u32 v28, 0x{EXC:x}, v28")
        a.e("s_lshl_b32 s35, s31, 7")
        a.e("v_add_u32 v30, s35, v28")
        a.e("v_subrev_u32 v31, s35, v28")
        CS = 64
        for jj in range(4):
            a.e(f"ds_read_b128 {vr(CS+4*jj,4)}, v{30 if jj<2 else 31} offset:{jj*64}")
        OV = 104
        a.e("s_lshl_b32 s34, s31, 6")
        a.e("s_add_u32 s34, s34, s28")
        a.e("s_lshl_b32 s35, s32, 5")
        for tt in range(4):
            a.e(f"s_{'add' if tt<2 else 'sub'}_u32 s38, s34, s35")
            a.e(f"s_add_u32 s38, s38, {16*tt}")
            a.e("v_add_u32 v28, s38, v2")
            if mode == "qkv":
                a.e("v_lshlrev_b32 v28, 5, v28")
            else:
                a.e("v_subrev_u32 v28, s34, v28")
                a.e("v_mul_u32_u24 v28, 144, v28")
            a.e(f"v_lshl_add_u32 v{OV+tt}, v3, 3, v28")
        a.e("s_waitcnt vmcnt(0) lgkmcnt(0)")
        if mode == "ffn1":
            c0 = -2 * math.log2(math.e) * 0.7978845608028654
            a.e(f"s_mov_b32 s40, {f32(c0*0.044715)}")
            a.e(f"s_mov_b32 s41, {f32(c0*0.044715)}")
            a.e(f"v_mov_b32 v108, {f32(c0)}")
            a.e(f"v_mov_b32 v109, {f32(c0)}")
            a.e("v_mov_b32 v110, 1.0")
            a.e("v_mov_b32 v111, 1.0")
        for jj in range(4):
            a.e("s_lshl_b32 s34, s31, 1")
            a.e(f"s_xor_b32 s34, s34, {jj}")
            a.e("s_lshl_b32 s34, s34, 4")
            a.e("s_lshl_b32 s35, s32, 6")
            a.e("s_add_u32 s34, s34, s35")
            a.e("s_add_u32 s34, s34, s29")
            if mode == "qkv":
                a.e("s_lshr_b32 s35, s34, 9")
                a.e("s_bfe_u32 s36, s34, 0x50004")
                a.e("s_lshl_b32 s37, s35, 21")
                a.e("s_lshl_b32 s36, s36, 16")
                a.e("s_add_u32 s37, s37, s36")
                a.e("s_cmp_eq_u32 s35, 0")
                a.e(f"s_cselect_b32 s39, {f32(QSCALE)}, 1.0")
            else:
                a.e(f"s_mul_i32 s57, s30, {64*144}")
                a.e("s_lshl_b32 s56, s31, 1")
                a.e(f"s_xor_b32 s56, s56, {jj}")
                a.e("s_lshl_b32 s56, s56, 5")
                a.e("s_add_u32 s56, s56, s57")
                BU = T + 16
                a.e(f"v_lshlrev_b32 v{BU}, 16, v{BIAS+2*jj}")
                a.e(f"v_and_b32 v{BU+1}, 0xffff0000, v{BIAS+2*jj}")
                a.e(f"v_lshlrev_b32 v{BU+2}, 16, v{BIAS+2*jj+1}")
                a.e(f"v_and_b32 v{BU+3}, 0xffff0000, v{BIAS+2*jj+1}")
            def A0(tt): return AC + (tt * NT + jj) * 4
            def st(tt): return vr(ST + 2 * tt, 2)
            TP = [(tt, p) for tt in range(4) for p in range(2)]
            if mode == "qkv":
                for tt in range(4):
                    a.e(f"v_mul_f32 v{T+2*tt}, s39, v{ST+2*tt+1}")
            for tt, p in TP:
                a.e(f"v_pk_fma_f32 {vr(A0(tt)+2*p,2)}, {vr(CS+4*jj+2*p,2)}, {st(tt)}, {vr(A0(tt)+2*p,2)} op_sel_hi:[1,0,1] neg_lo:[0,1,0] neg_hi:[0,1,0]")
            if mode == "qkv":
                for tt, p in TP:
                    a.e(f"v_pk_mul_f32 {vr(A0(tt)+2*p,2)}, {vr(A0(tt)+2*p,2)}, {vr(T+2*tt,2)} op_sel_hi:[1,0]")
            else:
                def tm(tt, p): return T + 4 * tt + 2 * p
                for tt, p in TP:
                    a.e(f"v_pk_fma_f32 {vr(A0(tt)+2*p,2)}, {vr(A0(tt)+2*p,2)}, {st(tt)}, {vr(BU+2*p,2)} op_sel:[0,1,0] op_sel_hi:[1,1,1]")
                for tt, p in TP:
                    a.e(f"v_pk_mul_f32 {vr(tm(tt,p),2)}, {vr(A0(tt)+2*p,2)}, {vr(A0(tt)+2*p,2)}")
                for tt, p in TP:
                    a.e(f"v_pk_fma_f32 {vr(tm(tt,p),2)}, {vr(tm(tt,p),2)}, s[40:41], v[108:109]")
                for tt, p in TP:
                    a.e(f"v_pk_mul_f32 {vr(tm(tt,p),2)}, {vr(tm(tt,p),2)}, {vr(A0(tt)+2*p,2)}")
                for k in range(16):
                    a.e(f"v_exp_f32 v{T+k}, v{T+k}")
                for tt, p in TP:
                    a.e(f"v_pk_add_f32 {vr(tm(tt,p),2)}, {vr(tm(tt,p),2)}, v[110:111]")
                for k in range(16):
                    a.e(f"v_rcp_f32 v{T+k}, v{T+k}")
                for tt, p in TP:
                    a.e(f"v_pk_mul_f32 {vr(A0(tt)+2*p,2)}, {vr(A0(tt)+2*p,2)}, {vr(tm(tt,p),2)}")
            for tt in range(4):
                o = T + 20 + 2 * tt
                a.e(f"v_cvt_pk_bf16_f32 v{o}, v{A0(tt)}, v{A0(tt)+1}")
                a.e(f"v_cvt_pk_bf16_f32 v{o+1}, v{A0(tt)+2}, v{A0(tt)+3}")
                if mode != "qkv":
                    a.e(f"v_add_u32 v{T+28+tt}, s56, v{OV+tt}")
            for tt in range(4):
                o = T + 20 + 2 * tt
                if mode == "qkv":
                    a.e(f"buffer_store_dwordx2 {vr(o,2)}, v{OV+tt}, s[20:23], s37 offen sc1")
                else:
                    a.e(f"ds_write_b64 v{T+28+tt}, {vr(o,2)}")
        if mode == "ffn1":
            a.e("v_lshrrev_b32 v28, 3, v1")
            a.e("v_and_b32 v29, 7, v1")
            a.e("v_mul_u32_u24 v30, 144, v28")
            a.e("v_lshl_add_u32 v30, v29, 4, v30")
            a.e("v_add_u32 v30, s57, v30")
            a.e("s_lshl_b32 s34, s31, 6")
            a.e("s_add_u32 s34, s34, s28")
            a.e("v_add_u32 v28, s34, v28")
            a.e("v_mul_u32_u24 v28, 0xe00, v28")
            a.e("v_lshl_add_u32 v28, v29, 4, v28")
            a.e("s_lshl_b32 s34, s29, 1")
            a.e("s_lshl_b32 s35, s32, 7")
            a.e("s_add_u32 s34, s34, s35")
            a.e("s_waitcnt lgkmcnt(0)")
            for it in range(8):
                a.e(f"ds_read_b128 {vr(AC+4*it,4)}, v30 offset:{it*8*144}")
            for it in range(8):
                a.e(f"s_waitcnt lgkmcnt({7-it})")
                a.e(f"s_add_u32 s35, s34, {it*8*3584}")
                a.e(f"buffer_store_dwordx4 {vr(AC+4*it,4)}, v28, s[20:23], s35 offen sc1")
    stamp(a, 5)
    stamp_flush(a, 6, 8, name, slot)
    a.lab(f"L_{name}_end")
    a.e("s_endpgm")
    nacc = 88 if LN else MT * NT * 4
    desc = kernel_desc(name, 128 + nacc, 128 + nacc)
    return a.L, desc, LDS, NWG
```
